```python
import torch

def _softmax(x, axis=-1):
    return torch.softmax(x, dim=axis)
def _gelu(x):
    return torch.nn.functional.gelu(x, approximate="tanh")
def _silu(x):
    return torch.nn.functional.silu(x)
def _sigmoid(x):
    return torch.sigmoid(x)
def _layernorm(x, axis=-1, eps=1e-5):
    m = x.mean(dim=axis, keepdim=True)
    v = x.var(dim=axis, keepdim=True, unbiased=False)
    return (x - m) / torch.sqrt(v + eps)
def _scatter_add(tgt, idx, src, axis=0):
    return tgt.clone().index_add_(axis, idx, src)
def _segment_sum(src, seg, n):
    out = torch.zeros((n,) + src.shape[1:], dtype=src.dtype)
    return out.index_add_(0, seg, src)
def _pad(x, pw):
    flat = tuple(v for pair in reversed(pw) for v in pair)
    return torch.nn.functional.pad(x, flat)

kernel_name = 'gated_mix__ssm_conv_s4d__ssm_conv_s5__prompt'

def setup_inputs():

    _w = (lambda a: (lambda t: t.to(torch.bfloat16) if t.is_floating_point() else t)(torch.as_tensor(a)))
    def _A_setup():
        Bsz, L, D, N = 1, 2048, 512, 128
        return {
            "u": _w((lambda *s: torch.randn(*s, dtype=torch.bfloat16) * 0.05)(Bsz, L, D)),
            "log_A_real": _w((lambda *s: torch.randn(*s, dtype=torch.bfloat16) * 3.2)(D, N) * 0.5),
            "A_imag": _w((lambda *s: torch.randn(*s, dtype=torch.bfloat16) * 0.05)(D, N) * 3.14),
            "C_real": _w((lambda *s: torch.randn(*s, dtype=torch.bfloat16) * 0.1)(D, N) / N ** 0.5),
            "C_imag": _w((lambda *s: torch.randn(*s, dtype=torch.bfloat16) * 0.1)(D, N) / N ** 0.5),
            "log_dt": _w((lambda *s: torch.randn(*s, dtype=torch.bfloat16) * 0.05)(D) * 0.5 - 4.0),
            "D_skip": _w((lambda *s: torch.randn(*s, dtype=torch.bfloat16) * 0.05)(D)),
        }
    _A_in = _A_setup()

    def _B_setup():
        B, S, D = 1, 2048, 512
        P = D
        Lambda_re = -0.5 * (lambda _x: torch.exp(torch.as_tensor(_x)))((lambda *s: torch.randn(*s, dtype=torch.bfloat16) * 0.2)(P))
        Lambda_im = (lambda *s: torch.randn(*s, dtype=torch.bfloat16) * 0.4)(P) * 1.0
        B_re = (lambda *s: torch.randn(*s, dtype=torch.bfloat16) * 0.2)(P, D) * (D ** -0.5)
        B_im = (lambda *s: torch.randn(*s, dtype=torch.bfloat16) * 0.2)(P, D) * (D ** -0.5)
        C_re = (lambda *s: torch.randn(*s, dtype=torch.bfloat16) * 0.2)(D, P) * (P ** -0.5)
        C_im = (lambda *s: torch.randn(*s, dtype=torch.bfloat16) * 0.2)(D, P) * (P ** -0.5)
        log_dt = (lambda *s: torch.randn(*s, dtype=torch.bfloat16) * 0.2)(P) * 0.3 - 2.0
        Dskip = (lambda *s: torch.randn(*s, dtype=torch.bfloat16) * 0.05)(D)
        return {
            "x": _w((lambda *s: torch.randn(*s, dtype=torch.bfloat16) * 0.05)(B, S, D)),
            "Lambda_re": _w(Lambda_re),
            "Lambda_im": _w(Lambda_im),
            "B_re": _w(B_re),
            "B_im": _w(B_im),
            "C_re": _w(C_re),
            "C_im": _w(C_im),
            "log_dt": _w(log_dt),
            "Dskip": _w(Dskip),
        }
    _B_in = _B_setup()

    return {
        "A_u": _A_in["u"],
        "A_log_A_real": _A_in["log_A_real"],
        "A_A_imag": _A_in["A_imag"],
        "A_C_real": _A_in["C_real"],
        "A_C_imag": _A_in["C_imag"],
        "A_log_dt": _A_in["log_dt"],
        "A_D_skip": _A_in["D_skip"],
        "B_x": _B_in["x"],
        "B_Lambda_re": _B_in["Lambda_re"],
        "B_Lambda_im": _B_in["Lambda_im"],
        "B_B_re": _B_in["B_re"],
        "B_B_im": _B_in["B_im"],
        "B_C_re": _B_in["C_re"],
        "B_C_im": _B_in["C_im"],
        "B_log_dt": _B_in["log_dt"],
        "B_Dskip": _B_in["Dskip"],
        "gate_w": _w((lambda *s: torch.randn(*s, dtype=torch.bfloat16) * 0.05)(512) * 16.0),
    }

def reference(A_u, A_log_A_real, A_A_imag, A_C_real, A_C_imag, A_log_dt, A_D_skip, B_x, B_Lambda_re, B_Lambda_im, B_B_re, B_B_im, B_C_re, B_C_im, B_log_dt, B_Dskip, gate_w):
    def _A_ref(u, log_A_real, A_imag, C_real, C_imag, log_dt, D_skip):
        L = u.shape[1]
        dt = torch.exp(log_dt)
        A = -torch.exp(log_A_real) + 1j * A_imag
        C = (C_real + 1j * C_imag) * dt[:, None]
        pos = (lambda x, dt: x.to(dt))(torch.arange(L), log_dt.dtype)
        P = torch.exp((A * dt[:, None])[:, :, None] * pos[None, None, :])
        K = 2.0 * torch.einsum("dn,dnl->dl", C, P).real
        L2 = 2 * L
        u_t = (lambda x, *d: x.permute(*d))(u, 0, 2, 1)
        Kf = (lambda x, *a, **k: torch.fft.rfft(x.float(), *a, **k))(K, L2)
        Uf = (lambda x, *a, **k: torch.fft.rfft(x.float(), *a, **k))(u_t, L2)
        y = (lambda x, *a, **k: torch.fft.irfft(x, *a, **k).to(torch.bfloat16))(Uf * Kf[None, :, :], L2)[:, :, :L]
        y = (lambda x, *d: x.permute(*d))(y, 0, 2, 1)
        return y + u * D_skip[None, None, :]

    def _B_ref(x, Lambda_re, Lambda_im, B_re, B_im, C_re, C_im, log_dt, Dskip):
        Bsz, L, H = x.shape
        Lam = Lambda_re + 1j * Lambda_im
        Bmat = B_re + 1j * B_im
        Cmat = C_re + 1j * C_im
        dt = torch.exp(log_dt)
        Lam_bar = torch.exp(dt * Lam)
        B_bar = ((Lam_bar - 1.0) / Lam)[:, None] * Bmat
        Bu = torch.einsum("bld,pd->blp", x + 0j, B_bar)
        h = torch.zeros_like(Bu[:, 0, :])
        hs = []
        for t in range(L):
            h = Lam_bar[None, :] * h + Bu[:, t, :]
            hs.append(h)
        hseq = torch.stack(hs, 1)
        y = 2.0 * torch.einsum("blp,dp->bld", hseq, Cmat).real + x * Dskip[None, None, :]
        return y

    x = A_u
    g = _sigmoid((x * gate_w).sum(-1, keepdims=True))
    a = _A_ref(x, A_log_A_real, A_A_imag, A_C_real, A_C_imag, A_log_dt, A_D_skip)
    b = _B_ref(x, B_Lambda_re, B_Lambda_im, B_B_re, B_B_im, B_C_re, B_C_im, B_log_dt, B_Dskip)
    return g * a + (1 - g) * b
```

```python
L=[]
def e(s): L.append("    "+s)
def lab(s): L.append(s+":")
def cm(s): L.append("    ; "+s)
WS_H=0; WS_C=4<<20; WS_Y=5<<20; WS_G=7<<20; WS_E=(7<<20)+65536
LOG2E="0x3fb8aa3b"; INV2PI="0x3e22f983"
def srd(d, base, nbytes, off=None):
    if off is None:
        e(f"s_mov_b32 s{d}, s{base}"); e(f"s_mov_b32 s{d+1}, s{base+1}")
    else:
        e(f"s_add_u32 s{d}, s{base}, {off}"); e(f"s_addc_u32 s{d+1}, s{base+1}, 0")
    e(f"s_mov_b32 s{d+2}, {nbytes}"); e(f"s_mov_b32 s{d+3}, 0x20000")
def S(d): return f"s[{d}:{d+3}]"
def V(a,n=2): return f"v[{a}:{a+n-1}]"
def A(a,n=4): return f"a[{a}:{a+n-1}]"
def cmul(d,a,b):
    e(f"v_pk_mul_f32 {V(d)}, {V(a)}, {V(b)} op_sel:[0,0] op_sel_hi:[0,1]")
    e(f"v_pk_fma_f32 {V(d)}, {V(a)}, {V(b)}, {V(d)} op_sel:[1,1,0] op_sel_hi:[1,0,1] neg_lo:[0,1,0]")
def cfma(d,a,b,c):
    e(f"v_pk_fma_f32 {V(d)}, {V(a)}, {V(b)}, {V(c)} op_sel:[0,0,0] op_sel_hi:[0,1,1]")
    e(f"v_pk_fma_f32 {V(d)}, {V(a)}, {V(b)}, {V(d)} op_sel:[1,1,0] op_sel_hi:[1,0,1] neg_lo:[0,1,0]")
def cexp(d,a2,brev,k,t):
    e(f"v_mul_f32 v{t}, {k}, v{a2}"); e(f"v_mul_f32 v{t+1}, {k}, v{brev}")
    e(f"v_exp_f32 v{t}, v{t}"); e(f"v_fract_f32 v{t+1}, v{t+1}")
    e(f"v_cos_f32 v{d}, v{t+1}"); e(f"v_sin_f32 v{d+1}, v{t+1}"); e("s_nop 0")
    e(f"v_mul_f32 v{d}, v{t}, v{d}"); e(f"v_mul_f32 v{d+1}, v{t}, v{d+1}")
def bfr(d,s):
    e(f"v_cvt_pk_bf16_f32 v{d}, v{s}, v{s}"); e(f"v_and_b32 v{d}, 0xffff0000, v{d}")
def expbf(d,s):
    e(f"v_mul_f32 v{d}, {LOG2E}, v{s}"); e(f"v_exp_f32 v{d}, v{d}"); e("s_nop 0"); bfr(d,d)
def fl(x):
    import struct
    return "0x%08x"%struct.unpack("<I",struct.pack("<f",x))[0]
def load_ptrs():
    e("s_load_dwordx16 s[16:31], s[0:1], 0"); e("s_load_dwordx16 s[32:47], s[0:1], 64"); e("s_load_dwordx8 s[48:55], s[0:1], 128")
def lane_bits():
    e("v_lshrrev_b32 v4, 6, v0"); e("v_and_b32 v1, 63, v0"); e("v_readfirstlane_b32 s3, v4")
    e("v_lshrrev_b32 v2, 5, v1"); e("v_and_b32 v3, 31, v1")
    e("v_bfe_u32 v4, v1, 1, 1"); e("v_bfe_u32 v5, v1, 3, 2"); e("v_lshl_or_b32 v4, v5, 1, v4")
    e("v_lshrrev_b32 v5, 2, v1"); e("v_lshrrev_b32 v6, 3, v1"); e("v_xor_b32 v5, v5, v6")
    e("v_lshrrev_b32 v6, 4, v1"); e("v_xor_b32 v5, v5, v6"); e("v_and_b32 v5, 1, v5")
```

```python
from common import *
UB=19360; BS=2208; TB=8704
def gen():
    lab("K1_CONV")
    e("s_sub_u32 s8, s2, 256"); e("s_and_b32 s4, s8, 7"); e("s_lshl_b32 s4, s4, 5"); e("s_lshr_b32 s8, s8, 3"); e("s_add_u32 s4, s4, s8")
    e("s_lshr_b32 s6, s3, 1"); e("s_and_b32 s7, s3, 1"); e("s_lshl_b32 s5, s4, 1"); e("s_add_u32 s5, s5, s6")
    e("s_lshl_b32 s8, s4, 9"); e("v_lshl_add_u32 v6, v0, 1, s8")
    e("s_lshl_b32 s8, s5, 1"); e("v_mov_b32 v7, s8")
    e("s_lshl_b32 s8, s4, 2"); e("v_lshl_add_u32 v8, v0, 11, s8")
    e("s_waitcnt lgkmcnt(0)")
    srd(56,18,131072); srd(60,20,131072); srd(64,22,131072); srd(68,24,131072); srd(72,26,1024); srd(76,16,2097152)
    for i in range(4): e(f"buffer_load_ushort v{20+i}, v6, {S(56+4*i)}, 0 offen")
    e(f"buffer_load_ushort v24, v7, {S(72)}, 0 offen")
    def gather(q):
        e(f"s_mov_b32 s8, {q*524288}")
        e(f"buffer_load_dword v{200+2*q}, v8, {S(76)}, s8 offen"); e(f"buffer_load_dword v{201+2*q}, v8, {S(76)}, s8 offen offset:1024")
    gather(0); gather(1)
    srd(80,40,524288); srd(84,42,524288); srd(88,48,1024); srd(92,54,0x800000)
    e("s_lshr_b32 s8, s4, 4"); e("s_lshl_b32 s8, s8, 15"); e("s_and_b32 s9, s4, 15"); e("s_lshl_b32 s9, s9, 6"); e("s_add_u32 s8, s8, s9")
    e("s_lshl_b32 s9, s3, 4"); e("s_add_u32 s8, s8, s9")
    e("v_lshlrev_b32 v9, 10, v3"); e("v_lshl_add_u32 v9, v2, 3, v9")
    e(f"buffer_load_dwordx2 v[208:209], v9, {S(80)}, s8 offen"); e(f"buffer_load_dwordx2 v[210:211], v9, {S(84)}, s8 offen")
    e("s_lshl_b32 s8, s4, 13"); e("s_lshl_b32 s9, s3, 11"); e("s_add_u32 s8, s8, s9"); e("v_lshlrev_b32 v9, 4, v1")
    e(f"buffer_load_dwordx4 v[212:215], v9, {S(76)}, s8 offen"); e(f"buffer_load_dwordx4 v[216:219], v9, {S(76)}, s8 offen offset:1024")
    e(f"buffer_load_dwordx4 v[220:223], v9, {S(88)}, 0 offen")
    gather(2); gather(3)
    for c in range(4):
        e(f"v_add_u32 v14, {c}, v0"); e("v_lshrrev_b32 v15, 6, v14"); e("v_and_b32 v14, 63, v14")
        e(f"v_mul_u32_u24 v15, {BS}, v15"); e(f"v_lshl_add_u32 v{10+c}, v14, 2, v15")
    e("v_lshrrev_b32 v14, 2, v3"); e("v_and_b32 v15, 3, v3"); e("v_and_b32 v16, 3, v14")
    e("v_mul_u32_u24 v14, 272, v14"); e("v_lshl_add_u32 v14, v15, 2, v14"); e("v_cmp_lt_u32 vcc, v15, v16")
    for i in range(4): e(f"v_mov_b32 v{224+i}, 0")
    e("s_and_saveexec_b64 s[10:11], vcc"); e(f"ds_write_b32 v14, v224 offset:{UB+7*BS}"); e("s_mov_b64 exec, s[10:11]")
    e(f"s_mul_i32 s12, s3, {TB}"); e("v_lshl_add_u32 v16, v1, 2, s12")
    e("v_mul_u32_u24 v17, 272, v3"); e("v_lshl_add_u32 v17, v2, 4, v17"); e("v_add_u32 v17, s12, v17")
    e("s_waitcnt vmcnt(13)")
    for r in range(20,25): e(f"v_lshlrev_b32 v{r}, 16, v{r}")
    expbf(24,24); expbf(20,20)
    e("v_mul_f32 v20, v20, v24"); e("v_mul_f32 v21, v21, v24")
    e(f"v_mul_f32 v20, {fl(-1.4426950408889634)}, v20"); e(f"v_mul_f32 v21, {INV2PI}, v21")
    e("v_add_f32 v24, v24, v24"); e("v_mul_f32 v22, v22, v24"); e("v_mul_f32 v23, v23, v24")
    Z8,Z16,Z1,Z2,Z4,Z256=26,28,30,32,34,36
    cexp(Z8,20,21,fl(8),18); cexp(Z16,20,21,fl(16),18)
    tmp=[60]
    def put(row,r,neg):
        t=tmp[0]; tmp[0]=60+(t-59)%4
        e(f"v_cvt_pk_bf16_f32 v{t}, v{r}, {'-' if neg else ''}v{r+1}"); e(f"ds_write_b32 v16, v{t} offset:{272*row}")
    e("v_mov_b32 v60, 0x3f80"); e("ds_write_b32 v16, v60"); tmp[0]=61
    put(1,Z8,0); put(2,Z16,0)
    ev,od=Z16,Z8
    for c in range(3,32):
        if c%2: n=40+((c>>1)%2)*2; cmul(n,od,Z16); od=n
        else:   n=44+((c>>1)%2)*2; cmul(n,ev,Z16); ev=n
        put(c,n,0)
    GF=128; RF=160
    for s in range(8): e(f"ds_read_b128 {V(GF+4*s,4)}, v17 offset:{32*s}")
    cexp(Z1,20,21,"1.0",18); cexp(Z2,20,21,"2.0",18); cexp(Z4,20,21,"4.0",18); cexp(Z256,20,21,fl(256),18)
    def row(h,reg): return (reg&3)+4*h+8*(reg>>2)
    for k in range(1,8): cmul(64+2*k, 22 if k==1 else 62+2*k, Z256)
    e("s_waitcnt lgkmcnt(0)")
    put(row(0,0),22,1); cmul(40,22,Z1); put(row(0,1),40,1)
    ev,od=22,40
    for j in range(2,8):
        if j%2: n=42 if od!=42 else 40; cmul(n,od,Z2); od=n
        else:   n=44 if ev!=44 else 46; cmul(n,ev,Z2); ev=n
        put(row(0,j),n,1)
    put(row(0,8),66,1); cmul(40,66,Z2); put(row(0,9),40,1); cmul(42,66,Z4); put(row(0,10),42,1)
    cmul(44,40,Z4); put(row(0,11),44,1); cmul(46,66,Z8); put(row(0,12),46,1)
    for (h,r0,b) in ((0,13,68),(1,0,70)):
        put(row(h,r0),b,1); cmul(40,b,Z4); put(row(h,r0+1),40,1); cmul(42,b,Z8); put(row(h,r0+2),42,1)
    for k in range(4):
        put(row(1,3+2*k),72+2*k,1); cmul(44+2*(k%2),72+2*k,Z8); put(row(1,4+2*k),44+2*(k%2),1)
    for s in range(8): e(f"ds_read_b128 {V(RF+4*s,4)}, v17 offset:{32*s}")
    D=64
    for s in range(8):
        e(f"s_waitcnt lgkmcnt({7-s})")
        e(f"v_mfma_f32_32x32x16_bf16 {V(D,16)}, {V(RF+4*s,4)}, {V(GF+4*s,4)}, {'0' if s==0 else V(D,16)}")
    e("s_mov_b32 s14, 0x05040100"); e("s_mov_b32 s15, 0x07060302")
    def uput(q):
        e(f"v_perm_b32 v18, v{201+2*q}, v{200+2*q}, s14"); e(f"v_perm_b32 v19, v{201+2*q}, v{200+2*q}, s15")
        for c in range(4):
            e(f"ds_write_b32 v{10+c}, v18 offset:{UB+(7+4*q)*BS+272*c}"); e(f"ds_write_b32 v{10+c}, v19 offset:{UB+(7+4*q)*BS+272*(4+c)}")
    e("v_lshl_add_u32 v16, v1, 4, s12"); e("s_xor_b32 s13, s3, 1"); e(f"s_mul_i32 s13, s13, {TB}"); e("v_lshl_add_u32 v17, v1, 4, s13")
    e("s_nop 7")
    for k in range(4): e(f"ds_write_b128 v16, {V(D+4*k,4)} offset:{1024*k}")
    e("s_waitcnt lgkmcnt(0)"); e("s_barrier")
    for k in range(4): e(f"ds_read_b128 {V(80+4*k,4)}, v17 offset:{1024*k}")
    e("s_waitcnt lgkmcnt(0)"); e("s_barrier")
    for k in range(8): e(f"v_pk_add_f32 {V(D+2*k)}, {V(D+2*k)}, {V(80+2*k)}")
    e("v_lshlrev_b32 v16, 4, v0")
    for k in range(3): e(f"ds_write_b128 v16, v[224:227] offset:{UB+4096*k}")
    e("v_min_u32 v16, 3152, v16"); e(f"ds_write_b128 v16, v[224:227] offset:{UB+12288}")
    e("s_mul_i32 s12, s6, 8960"); e("s_mul_i32 s13, s7, 4480"); e("s_add_u32 s13, s13, s12")
    e("v_and_b32 v16, 15, v1"); e("v_lshl_add_u32 v16, v16, 4, s13"); e("ds_write_b128 v16, v[224:227] offset:4096")
    e("v_sub_u32 v16, 31, v3"); e("v_lshl_add_u32 v16, v16, 4, s13")
    e("v_and_b32 v17, 1, v1"); e("v_cmp_eq_u32 vcc, 1, v17"); e("s_nop 1")
    def chunk(kb,el,r):
        for q in range(4):
            hi=6+r-2*q
            e(f"v_cvt_pk_bf16_f32 v{80+q}, v{el[hi]}, v{el[hi-1]}")
        e(f"ds_write_b128 v16, v[80:83] offset:{512*(7-kb)}"); e("s_nop 0")
    def els(lst,prev):
        d={i:x for i,x in enumerate(lst)}; d[-1]=prev; return d
    def r2(b): return els([b,b,b,b+1,b+1,b+1,b+2,b+2],b)
    for k in range(4): e(f"v_cndmask_b32 v{84+k}, v{D+3+2*k}, v{D+4+2*k}, vcc")
    e("s_cmp_eq_u32 s7, 0"); e("s_cbranch_scc1 C_R0")
    for r in (1,0):
        if r==0: lab("C_R0")
        e("s_mov_b32 exec_hi, 0")
        chunk(0,els([D+i for i in range(8)],224),r)
        chunk(1,els([D+8,D+8,D+9,D+10,D+10,D+10,D+11,D+12],D+8),r)
        chunk(2,r2(D+13),r)
        if r==0:
            e(f"v_cvt_pk_bf16_f32 v80, v{D+7}, v{D+7}"); e(f"ds_write_b16 v16, v80 offset:{512*7-2}")
        e("s_mov_b32 exec_hi, -1"); e("s_mov_b32 exec_lo, 0")
        chunk(3,r2(D),r)
        for k in range(4):
            a=D+3+2*k; chunk(4+k,els([a,a,a,a,84+k,a+1,a+1,a+1],a),r)
        e("s_mov_b32 exec_lo, -1")
        if r==1: e("s_branch C_RD")
    lab("C_RD")
    e("s_waitcnt vmcnt(9)"); uput(0); uput(1)
    e("s_waitcnt vmcnt(7)")
    e("v_perm_b32 v80, v210, v208, s14"); e("v_perm_b32 v81, v210, v208, s15"); e("v_perm_b32 v82, v211, v209, s14"); e("v_perm_b32 v83, v211, v209, s15")
    e("s_lshl_b32 s8, s4, 12"); e(f"s_add_u32 s8, s8, {WS_C}"); e("v_lshlrev_b32 v18, 4, v0")
    e("s_waitcnt vmcnt(4)")
    e(f"buffer_store_dwordx4 v[80:83], v18, {S(92)}, s8 offen")
    for rr in range(2):
        for i in range(4):
            x=212+4*rr+i
            e(f"v_lshlrev_b32 v84, 16, v{x}"); e(f"v_and_b32 v85, 0xffff0000, v{x}")
            e(f"v_lshlrev_b32 v86, 16, v{220+i}"); e(f"v_and_b32 v87, 0xffff0000, v{220+i}")
            e("v_pk_mul_f32 v[84:85], v[84:85], v[86:87]"); e("v_cvt_pk_bf16_f32 v84, v84, v85")
            e("v_and_b32 v85, 0xffff0000, v84"); e("v_lshlrev_b32 v84, 16, v84")
            if i==0: e(f"v_add_f32 v{88+rr}, v84, v85")
            else: e(f"v_add_f32 v{88+rr}, v{88+rr}, v84"); e(f"v_add_f32 v{88+rr}, v{88+rr}, v85")
    for md in ("row_shr:1","row_shr:2","row_shr:4","row_shr:8","row_bcast:15 row_mask:0xa","row_bcast:31 row_mask:0xc"):
        e("s_nop 0")
        for rr in range(2): e(f"v_add_f32_dpp v{88+rr}, v{88+rr}, v{88+rr} {md}")
    for rr in range(2):
        bfr(88+rr,88+rr); e(f"v_mul_f32 v{88+rr}, {fl(-1.4426950408889634)}, v{88+rr}"); e(f"v_exp_f32 v{88+rr}, v{88+rr}"); e("s_nop 0")
        e(f"v_add_f32 v{88+rr}, 1.0, v{88+rr}"); e(f"v_rcp_f32 v{88+rr}, v{88+rr}"); e("s_nop 0"); bfr(88+rr,88+rr)
    e("s_lshr_b32 s8, s4, 3"); e("s_lshr_b32 s9, s4, 1"); e("s_xor_b32 s8, s8, s9"); e("s_lshr_b32 s9, s4, 2"); e("s_xor_b32 s8, s8, s9"); e("s_and_b32 s8, s8, 1"); e("s_lshl_b32 s8, s8, 6")
    e("s_and_b32 s9, s4, 7"); e("s_lshl_b32 s9, s9, 3"); e("s_add_u32 s8, s8, s9")
    e("s_lshr_b32 s9, s4, 4"); e("s_lshl_b32 s9, s9, 9"); e("s_add_u32 s8, s8, s9")
    e("s_sub_u32 s9, 3, s3"); e("s_lshl_b32 s9, s9, 7"); e("s_add_u32 s8, s8, s9"); e(f"s_add_u32 s8, s8, {WS_G}")
    e("v_cmp_eq_u32 vcc, 63, v1"); e("v_mov_b32 v18, 0x7ffffff0"); e("s_nop 0"); e("v_cndmask_b32 v18, v18, v224, vcc")
    e("s_waitcnt vmcnt(1)")
    e(f"buffer_store_dwordx2 v[88:89], v18, {S(92)}, s8 offen")
    uput(2); uput(3)
    e("v_lshl_or_b32 v18, v5, 3, v4"); e("v_sub_u32 v18, v2, v18"); e("v_add_u32 v18, 15, v18"); e("v_and_b32 v19, 1, v1"); e("v_mul_u32_u24 v19, 4480, v19")
    e("v_lshl_add_u32 v20, v18, 4, v19"); e("s_xor_b32 s9, s7, 1"); e("s_lshl_b32 s8, s9, 10"); e("s_add_u32 s8, s8, s12"); e("v_add_u32 v20, s8, v20")
    e("v_and_b32 v18, 3, v1"); e("v_bfe_u32 v19, v1, 3, 1"); e("v_lshl_or_b32 v22, v19, 2, v18")
    e("v_bfe_u32 v19, v1, 4, 1"); e("v_lshl_or_b32 v23, v5, 1, v19")
    e(f"v_mul_u32_u24 v18, {BS}, v22"); e("v_mul_u32_u24 v19, 272, v23"); e("v_add_u32 v18, v18, v19"); e("v_lshl_add_u32 v21, v2, 4, v18")
    e(f"s_mul_i32 s8, s9, {4*BS}"); e("s_mul_i32 s9, s6, 1088"); e("s_add_u32 s8, s8, s9"); e("v_add_u32 v21, s8, v21")
    e("s_waitcnt lgkmcnt(0)"); e("s_barrier")
    T0,T1,F=64,80,96; NB=3
    def rd(s):
        f=F+16*(s%NB)
        ob=UB+(3-(s>>3))*BS+224-32*(s&7)
        e(f"ds_read_b128 {V(f,4)}, v20 offset:{3040-32*s}"); e(f"ds_read_b128 {V(f+4,4)}, v21 offset:{ob}")
        e(f"ds_read_b128 {V(f+8,4)}, v21 offset:{ob+8*BS}"); e(f"ds_read_b128 {V(f+12,4)}, v20 offset:{992-32*s}")
    rd(0); rd(1)
    for s in range(32):
        f=F+16*(s%NB)
        if s+2<32: rd(s+2); e("s_waitcnt lgkmcnt(8)")
        else: e(f"s_waitcnt lgkmcnt({4 if s==30 else 0})")
        e(f"v_mfma_f32_32x32x16_bf16 {V(T0,16)}, {V(f,4)}, {V(f+4,4)}, {'0' if s==0 else V(T0,16)}")
        e(f"v_mfma_f32_32x32x16_bf16 {V(T1,16)}, {V(f,4)}, {V(f+8,4)}, {'0' if s==0 else V(T1,16)}")
        e(f"v_mfma_f32_32x32x16_bf16 {V(T1,16)}, {V(f+12,4)}, {V(f+4,4)}, {V(T1,16)}")
    e("s_barrier")
    e("s_lshl_b32 s8, s3, 12"); e("v_lshl_add_u32 v16, v1, 4, s8"); e("v_xor_b32 v17, 4096, v16")
    e("s_lshl_b32 s8, s5, 12"); e("s_lshl_b32 s9, s7, 11"); e("s_add_u32 s8, s8, s9"); e(f"s_add_u32 s8, s8, {WS_Y}")
    e("v_lshl_or_b32 v18, v22, 2, v23"); e("v_lshl_or_b32 v18, v18, 1, v2"); e("v_lshlrev_b32 v18, 5, v18")
    e("s_nop 3"); e("s_cmp_eq_u32 s7, 0"); e("s_cbranch_scc1 C_F0")
    for ww in (1,0):
        if ww==0: lab("C_F0")
        keep,send=(T1,T0) if ww else (T0,T1)
        for k in range(4): e(f"ds_write_b128 v16, {V(send+4*k,4)} offset:{1024*k}")
        e("s_waitcnt lgkmcnt(0)"); e("s_barrier")
        for k in range(4): e(f"ds_read_b128 {V(96+4*k,4)}, v17 offset:{1024*k}")
        e("s_waitcnt lgkmcnt(0)")
        for k in range(8):
            e(f"v_pk_add_f32 {V(96+2*k)}, {V(96+2*k)}, {V(keep+2*k)}"); e(f"v_cvt_pk_bf16_f32 v{112+k}, v{96+2*k}, v{97+2*k}")
        e(f"buffer_store_dwordx4 v[112:115], v18, {S(92)}, s8 offen"); e(f"buffer_store_dwordx4 v[116:119], v18, {S(92)}, s8 offen offset:16")
        e("s_endpgm")
```

```python
from common import *
def gen():
    lab("K1_GEMM")
    e("s_and_b32 s6, s2, 7"); e("s_lshr_b32 s7, s2, 3")
    e("s_lshr_b32 s4, s6, 1"); e("s_lshl_b32 s4, s4, 2"); e("s_and_b32 s8, s7, 3"); e("s_add_u32 s4, s4, s8")
    e("s_and_b32 s5, s6, 1"); e("s_lshl_b32 s5, s5, 3"); e("s_lshr_b32 s8, s7, 2"); e("s_add_u32 s5, s5, s8")
    e("v_lshrrev_b32 v6, 3, v1"); e("v_and_b32 v7, 7, v1")
    e("v_bfe_u32 v8, v6, 1, 1")
    e("v_xor_b32 v7, v7, v8")
    e("v_and_b32 v9, 1, v6"); e("v_lshl_or_b32 v9, v9, 3, v8")
    e("v_lshrrev_b32 v10, 2, v6"); e("v_lshl_or_b32 v9, v10, 4, v9")
    e("s_lshl_b32 s8, s3, 5"); e("v_add_u32 v9, s8, v9")
    for q in range(4):
        e(f"v_xor_b32 v10, {2*q}, v7"); e(f"v_lshlrev_b32 v10, 4, v10")
        e(f"v_add_u32 v11, {2*q}, v9"); e(f"v_lshl_add_u32 v{12+q}, v11, 10, v10")
    e("s_and_b32 s8, s3, 1"); e("s_lshl_b32 s9, s8, 2"); e("s_lshl_b32 s8, s8, 4")
    for qq in range(2):
        e(f"v_xor_b32 v10, s9, v7"); e(f"v_xor_b32 v10, {2*qq}, v10"); e("v_lshlrev_b32 v10, 4, v10")
        e(f"v_add3_u32 v11, s8, v6, {8*qq}"); e(f"v_lshl_add_u32 v{16+qq}, v11, 10, v10")
    e("s_waitcnt lgkmcnt(0)")
    e("s_lshl_b32 s8, s4, 17"); srd(56,16,131072,"s8")
    e("s_cmp_lt_u32 s3, 2"); e("s_cselect_b32 s10, s36, s38"); e("s_cselect_b32 s11, s37, s39")
    e("s_lshl_b32 s8, s5, 15"); srd(60,10,32768,"s8")
    srd(64,32,1024); srd(68,34,1024); srd(72,44,1024)
    e("s_lshl_b32 s8, s5, 13"); e(f"s_add_u32 s8, s8, {WS_E}"); srd(76,54,8192,"s8")
    srd(80,52,256)
    e("s_lshl_b32 s8, s4, 18"); srd(84,54,262144,"s8")
    e("s_lshl_b32 s8, s5, 6"); e("v_lshl_add_u32 v10, v3, 1, s8")
    e(f"buffer_load_ushort v20, v10, {S(64)}, 0 offen"); e(f"buffer_load_ushort v21, v10, {S(68)}, 0 offen"); e(f"buffer_load_ushort v22, v10, {S(72)}, 0 offen")
    e("s_lshl_b32 s8, s4, 9"); e("v_lshl_add_u32 v18, v3, 4, s8"); e("v_mov_b32 v10, 0x7ffffff0")
    e("v_cmp_lt_u32 vcc, 223, v0"); e("v_mov_b32 v24, 0"); e("v_mov_b32 v25, 0"); e("v_cndmask_b32 v18, v10, v18, vcc")
    e("v_mov_b32 v26, 0"); e("v_mov_b32 v27, 0")
    e(f"buffer_store_dwordx4 v[24:27], v18, {S(76)}, 0 offen sc1")
    e("s_lshl_b32 s12, s5, 2"); e("v_mov_b32 v19, s12"); e("v_cmp_eq_u32 vcc, 255, v0"); e("s_nop 1"); e("v_cndmask_b32 v19, v10, v19, vcc")
    e("s_lshl_b32 s13, s3, 12"); e("s_lshl_b32 s14, s3, 11"); e("s_add_u32 s14, s14, 16384")
    def dma(st):
        b=(st%3)*24576
        e(f"s_mov_b32 s15, {128*st}")
        for q in range(4):
            e(f"s_add_u32 m0, s13, {b+1024*q}"); e("s_nop 0"); e(f"buffer_load_dwordx4 v{12+q}, {S(56)}, s15 offen lds")
        for q in range(2):
            e(f"s_add_u32 m0, s14, {b+1024*q}"); e("s_nop 0"); e(f"buffer_load_dwordx4 v{16+q}, {S(60)}, s15 offen lds")
    for st in range(3): dma(st)
    for s in range(4):
        e(f"v_or_b32 v10, {2*s}, v2"); e("v_xor_b32 v10, v10, v4"); e("v_lshlrev_b32 v10, 4, v10")
        e(f"v_lshl_add_u32 v{28+s}, v3, 7, v10"); e(f"v_add_u32 v{32+s}, s13, v{28+s}"); e(f"v_add_u32 v{28+s}, 16384, v{28+s}")
    e("s_waitcnt vmcnt(18)")
    for r in (20,21,22): e(f"v_lshlrev_b32 v{r}, 16, v{r}")
    expbf(22,22)
    e("v_mul_f32 v36, v22, v20"); e("v_mul_f32 v37, v22, v21")
    e(f"v_mul_f32 v36, {LOG2E}, v36"); e(f"v_mul_f32 v37, {INV2PI}, v37")
    cexp(40,36,37,"1.0",38); cexp(42,36,37,fl(8),38); cexp(44,36,37,fl(128),38); cexp(46,36,37,fl(256),38)
    e("v_lshrrev_b32 v10, 5, v0"); e("v_lshlrev_b32 v10, 4, v10"); e("v_cvt_f32_u32 v10, v10")
    cexp(48,36,37,"v10",38)
    e("v_mul_f32 v38, v20, v20"); e("v_fmac_f32 v38, v21, v21"); e("v_rcp_f32 v38, v38")
    e("v_add_f32 v52, -1.0, v40"); e("v_mov_b32 v53, v41"); e("v_add_f32 v38, v38, v38")
    e("v_mul_f32 v54, v20, v38"); e("v_mul_f32 v55, v21, v38"); e("v_sub_f32 v55, 0, v55")
    cmul(50,52,54)
    RE=64; IM=80; FR=96
    waits=[12,12,12,12,12,13,7,1]
    for k in range(8):
        b=(k%3)*24576
        e(f"s_waitcnt vmcnt({waits[k]})"); e("s_barrier")
        for s in range(4):
            e(f"ds_read_b128 {V(FR+12*s,4)}, v{32+s} offset:{b}")
            e(f"ds_read_b128 {V(FR+12*s+4,4)}, v{28+s} offset:{b}")
            e(f"ds_read_b128 {V(FR+12*s+8,4)}, v{28+s} offset:{b+4096}")
        def mf(s):
            for (acc,o) in ((RE,4),(IM,8)):
                c="0" if (k==0 and s==0) else V(acc,16)
                e(f"v_mfma_f32_32x32x16_bf16 {V(acc,16)}, {V(FR+12*s,4)}, {V(FR+12*s+o,4)}, {c}")
        e("s_waitcnt lgkmcnt(9)"); mf(0); e("s_waitcnt lgkmcnt(6)"); mf(1)
        e("s_waitcnt lgkmcnt(0)")
        if k+3<8:
            e("s_barrier"); mf(2); dma(k+3)
            if k==4:
                e("v_mov_b32 v10, 1"); e(f"buffer_atomic_add v10, v19, {S(80)}, 0 offen sc1")
            mf(3)
        else:
            mf(2); mf(3)
    EB=49152
    e("v_mov_b32 v10, s12"); e(f"buffer_load_dword v11, v10, {S(80)}, 0 offen sc1")
    e("v_lshlrev_b32 v56, 4, v0"); e(f"ds_write_b128 v56, v[24:27] offset:{EB}")
    e("v_lshrrev_b32 v56, 5, v0"); e("v_lshlrev_b32 v56, 9, v56"); e("v_lshl_add_u32 v56, v3, 3, v56")
    e("s_nop 7")
    def step(dr,di,pr,pi,t):
        e(f"v_pk_fma_f32 {V(dr)}, {V(40)}, {V(pr)}, {V(RE+2*t)} op_sel:[0,0,0] op_sel_hi:[0,1,1]")
        e(f"v_pk_fma_f32 {V(di)}, {V(40)}, {V(pi)}, {V(IM+2*t)} op_sel:[0,0,0] op_sel_hi:[0,1,1]")
        e(f"v_pk_fma_f32 {V(dr)}, {V(40)}, {V(pi)}, {V(dr)} op_sel:[1,0,0] op_sel_hi:[1,1,1] neg_lo:[1,0,0] neg_hi:[1,0,0]")
        e(f"v_pk_fma_f32 {V(di)}, {V(40)}, {V(pr)}, {V(di)} op_sel:[1,0,0] op_sel_hi:[1,1,1]")
    pr,pi=RE,IM
    for t in range(1,8):
        dr,di=(96,98) if t%2 else (100,102)
        step(dr,di,pr,pi,t); pr,pi=dr,di
    e("v_mov_b32 v58, v96"); e("v_mov_b32 v59, v98"); e("v_mov_b32 v60, v97"); e("v_mov_b32 v61, v99")
    e(f"ds_write_b64 v56, v[58:59] offset:{EB+4096}"); e(f"ds_write_b64 v56, v[60:61] offset:{EB+4096+256}")
    e("s_waitcnt lgkmcnt(0)"); e("s_barrier")
    for j in range(14): e(f"ds_read_b64 {V(96+2*j)}, v56 offset:{EB+512+256*j}")
    for j in range(1,14):
        e(f"s_waitcnt lgkmcnt({13-j})"); cfma(96+2*j,42,96+2*j-2,96+2*j)
    cfma(58,42,122,58); cfma(60,42,58,60)
    e("v_mov_b32 v24, v60"); e("v_mov_b32 v25, 1"); e("v_mov_b32 v26, v61"); e("v_mov_b32 v27, 1")
    e(f"buffer_store_dwordx4 v[24:27], v18, {S(76)}, 0 offen sc1")
    lab("G_CNT")
    e("s_waitcnt vmcnt(0)"); e("v_readfirstlane_b32 s8, v11"); e("s_cmp_eq_u32 s8, 16"); e("s_cbranch_scc1 G_CNT_OK")
    e("v_mov_b32 v10, s12"); e(f"buffer_load_dword v11, v10, {S(80)}, 0 offen sc1"); e("s_branch G_CNT")
    lab("G_CNT_OK")
    e("s_lshl_b32 s8, s4, 9"); e("s_sub_u32 s8, s8, 8192"); e("v_lshl_add_u32 v10, v1, 4, s8")
    for j in range(8):
        e(f"v_add_u32 v{12+j}, {1024*j}, v10")
    e("v_add_u32 v11, s4, v2"); e("v_and_b32 v11, -2, v11")
    G=128
    def gl():
        for j in range(8): e(f"buffer_load_dwordx4 {V(G+4*j,4)}, v{12+j}, {S(76)}, 0 offen sc1")
    gl()
    for t in range(8):
        e(f"v_pk_mul_f32 {V(96)}, {V(50)}, {V(IM+2*t)} op_sel:[1,0] op_sel_hi:[1,1]")
        e(f"v_pk_mul_f32 {V(IM+2*t)}, {V(50)}, {V(IM+2*t)} op_sel:[0,0] op_sel_hi:[0,1]")
        e(f"v_pk_fma_f32 {V(IM+2*t)}, {V(50)}, {V(RE+2*t)}, {V(IM+2*t)} op_sel:[1,0,0] op_sel_hi:[1,1,1]")
        e(f"v_pk_fma_f32 {V(RE+2*t)}, {V(50)}, {V(RE+2*t)}, {V(96)} op_sel:[0,0,0] op_sel_hi:[0,1,1] neg_lo:[0,0,1] neg_hi:[0,0,1]")
    lab("G_POLL")
    e("s_waitcnt vmcnt(0)")
    e(f"v_add_u32 v10, v{G+1}, v{G+3}")
    for j in range(1,8): e(f"v_add3_u32 v10, v10, v{G+4*j+1}, v{G+4*j+3}")
    e("v_cmp_ne_u32 vcc, v10, v11"); e("s_nop 4"); e("s_cbranch_vccz G_POLL_OK")
    gl(); e("s_branch G_POLL")
    lab("G_POLL_OK")
    for j in range(8): e(f"v_mov_b32 v{G+4*j+1}, v{G+4*j+2}")
    for j in range(1,8): cfma(G+4*j,46,G+4*j-4,G+4*j)
    HX=G+28
    e(f"v_mov_b32 v96, v{HX}"); e(f"v_mov_b32 v97, v{HX+1}"); e("s_nop 1")
    e(f"v_permlane32_swap_b32 v96, v{HX}"); e(f"v_permlane32_swap_b32 v97, v{HX+1}"); e("s_nop 1")
    cfma(HX,44,96,HX)
    cmul(98,48,HX)
    e(f"v_pk_add_f32 {V(122)}, {V(122)}, {V(98)}")
    cfma(58,42,98,58)
    cmul(100,50,122); cmul(102,50,58)
    e("v_mov_b32 v96, v100"); e("v_mov_b32 v97, v102"); e("v_mov_b32 v98, v101"); e("v_mov_b32 v99, v103")
    e("v_lshrrev_b32 v56, 5, v0"); e("v_mul_u32_u24 v56, 2304, v56"); e("v_lshl_add_u32 v56, v3, 2, v56")
    pr,pi=96,98
    for t in range(8):
        dr,di=(104,106) if t%2==0 else (108,110)
        step(dr,di,pr,pi,t); pr,pi=dr,di
        e(f"v_cvt_pk_bf16_f32 v{112+2*(t%2)}, v{dr}, -v{di}"); e(f"v_cvt_pk_bf16_f32 v{113+2*(t%2)}, v{dr+1}, -v{di+1}")
        e(f"ds_write_b32 v56, v{112+2*(t%2)} offset:{144*t}"); e(f"ds_write_b32 v56, v{113+2*(t%2)} offset:{144*(t+8)}")
    e("v_lshl_or_b32 v10, v5, 3, v4"); e("v_and_b32 v11, 1, v1"); e("v_lshl_add_u32 v10, v10, 3, v11")
    e("s_lshl_b32 s8, s3, 1"); e("s_sub_u32 s8, 6, s8"); e("v_add_u32 v10, s8, v10")
    e("v_mul_u32_u24 v10, 144, v10"); e("v_lshl_add_u32 v10, v2, 4, v10")
    e("s_lshl_b32 s8, s3, 16"); e("s_lshl_b32 s9, s5, 12"); e("s_add_u32 s8, s8, s9"); e("v_lshlrev_b32 v11, 4, v1")
    e("s_waitcnt lgkmcnt(0)"); e("s_barrier")
    for k in range(4): e(f"ds_read_b128 {V(128+4*k,4)}, v10 offset:{32*k}")
    for k in range(4):
        e(f"s_waitcnt lgkmcnt({3-k})"); e(f"buffer_store_dwordx4 {V(128+4*k,4)}, v11, {S(84)}, s8 offen offset:{1024*k}")
    e("s_endpgm")
```

```python
from common import *
def gen():
    e("s_cmp_ge_u32 s2, 256"); e("s_cbranch_scc1 K2_END")
    load_ptrs(); lane_bits()
    e("s_and_b32 s8, s2, 7"); e("s_lshr_b32 s7, s2, 3")
    e("s_lshr_b32 s4, s8, 1"); e("s_lshl_b32 s4, s4, 2"); e("s_and_b32 s9, s7, 3"); e("s_add_u32 s4, s4, s9")
    e("s_bfe_u32 s5, s7, 0x10002")
    e("s_and_b32 s6, s8, 1"); e("s_lshl_b32 s6, s6, 2"); e("s_lshr_b32 s9, s7, 3"); e("s_add_u32 s6, s6, s9")
    e("s_lshl_b32 s8, s3, 14"); e("v_lshl_add_u32 v6, v1, 4, s8"); e("v_add_u32 v7, 0x10000, v6")
    e("s_waitcnt lgkmcnt(0)")
    e("s_lshl_b32 s8, s4, 18"); e("s_lshl_b32 s9, s5, 17"); e("s_add_u32 s8, s8, s9"); srd(56,54,131072,"s8")
    e("s_lshl_b32 s8, s6, 17"); e(f"s_add_u32 s8, s8, {WS_C}"); srd(60,54,131072,"s8")
    def ld(k):
        if k%4==0: e(f"s_mov_b32 s15, {1024*k}")
        o=1024*(k%4)
        e(f"buffer_load_dwordx4 {A(16*k)}, v6, {S(56)}, s15 offen offset:{o}"); e(f"buffer_load_dwordx4 {A(16*k+8)}, v6, {S(60)}, s15 offen offset:{o}")
        e(f"buffer_load_dwordx4 {A(16*k+12)}, v7, {S(60)}, s15 offen offset:{o}"); e(f"buffer_load_dwordx4 {A(16*k+4)}, v7, {S(56)}, s15 offen offset:{o}")
    NP=15
    for k in range(NP): ld(k)
    srd(64,54,0x800000); srd(68,16,2097152); srd(72,28,1024); srd(76,46,1024); srd(80,50,4194304)
    e("s_lshr_b32 s10, s3, 1"); e("s_lshl_b32 s8, s5, 1"); e("s_add_u32 s10, s10, s8")
    e("s_and_b32 s8, s3, 1"); e("s_lshl_b32 s8, s8, 5"); e("s_lshl_b32 s9, s6, 6"); e("s_add_u32 s8, s8, s9"); e("v_add_u32 v8, s8, v3")
    e("s_lshl_b32 s8, s4, 2"); e("s_add_u32 s8, s8, s10")
    e(f"s_lshl_b32 s11, s8, 6"); e(f"s_add_u32 s11, s11, {WS_Y}"); e("v_lshlrev_b32 v9, 12, v8"); e("v_lshl_add_u32 v9, v2, 5, v9")
    e(f"s_lshl_b32 s12, s8, 7"); e(f"s_add_u32 s12, s12, {WS_G}"); e("v_lshlrev_b32 v10, 6, v2")
    e("v_lshlrev_b32 v11, 1, v8")
    e("s_lshl_b32 s8, s4, 7"); e("s_lshl_b32 s9, s10, 1"); e("s_sub_u32 s8, s8, s9"); e("s_add_u32 s8, s8, 6")
    e("v_lshl_add_u32 v12, v2, 6, s8"); e("v_xor_b32 v13, 64, v12")
    e("v_lshl_add_u32 v12, v12, 10, v11"); e("v_lshl_add_u32 v13, v13, 10, v11")
    e("v_lshlrev_b32 v14, 1, v12"); e("v_lshlrev_b32 v15, 1, v13")
    for j in range(8): e(f"s_mov_b32 s{84+j}, {8192*j}"); e(f"s_mov_b32 s{92+j}, {16384*j}")
    ACC=64; X=128; Y=144; G=152; DA=168; DB=169
    def par(j): return ((j>>1)^(j>>2))&1
    epi=[f"buffer_load_dwordx4 {V(Y,4)}, v9, {S(64)}, s11 offen", f"buffer_load_dwordx4 {V(Y+4,4)}, v9, {S(64)}, s11 offen offset:16"]
    epi+=[f"buffer_load_dwordx4 {V(G+4*q,4)}, v10, {S(64)}, s12 offen offset:{16*q}" for q in range(4)]
    epi+=[f"buffer_load_ushort v{DA}, v11, {S(72)}, 0 offen", f"buffer_load_ushort v{DB}, v11, {S(76)}, 0 offen"]
    for j in range(8):
        for r in range(2): epi.append(f"buffer_load_ushort v{X+2*j+r}, v{12+par(j)}, {S(68)}, s{84+j} offen offset:{1024*r}")
    out=4*NP; nepi=0
    for k in range(16):
        e(f"s_waitcnt vmcnt({out-4})"); out-=4
        for (mt,nt) in ((0,0),(0,1),(1,1),(1,0)):
            acc=V(ACC+16*(2*mt+nt),16)
            e(f"v_mfma_f32_32x32x16_bf16 {acc}, {A(16*k+4*mt)}, {A(16*k+8+4*nt)}, {'0' if k==0 else acc}")
        if k+NP<16: ld(k+NP); out+=4
        else:
            for _ in range(4):
                if nepi<len(epi): e(epi[nepi]); nepi+=1; out+=1
    assert nepi==len(epi)
    e("s_lshl_b32 s8, s3, 12"); e("v_lshl_add_u32 v16, v1, 4, s8"); e("s_lshl_b32 s8, s3, 14"); e("v_lshl_add_u32 v17, v1, 4, s8")
    e("s_nop 7")
    for q in (0,1,3,2):
        for k in range(4): e(f"ds_write_b128 v16, {V(ACC+16*q+4*k,4)} offset:{q*16384+1024*k}")
    e("s_waitcnt lgkmcnt(0)"); e("s_barrier")
    for w in range(4):
        for k in range(4): e(f"ds_read_b128 {V(ACC+16*w+4*k,4)}, v17 offset:{w*4096+1024*k}")
    e("s_waitcnt vmcnt(0)")
    e(f"v_lshlrev_b32 v{DA}, 16, v{DA}"); e(f"v_lshlrev_b32 v{DB}, 16, v{DB}")
    for j in range(8):
        x=X+2*j; g=G+2*j
        e(f"v_lshlrev_b32 v{x}, 16, v{x}"); e(f"v_lshlrev_b32 v{x+1}, 16, v{x+1}")
        e(f"v_pk_mul_f32 v[20:21], {V(x)}, {V(DA)} op_sel:[0,0] op_sel_hi:[1,0]"); e(f"v_pk_mul_f32 v[22:23], {V(x)}, {V(DA)} op_sel:[0,1] op_sel_hi:[1,1]")
        e("v_cvt_pk_bf16_f32 v20, v20, v21"); e("v_cvt_pk_bf16_f32 v22, v22, v23")
        e("v_and_b32 v21, 0xffff0000, v20"); e("v_lshlrev_b32 v20, 16, v20")
        e(f"v_and_b32 v{x+1}, 0xffff0000, v22"); e(f"v_lshlrev_b32 v{x}, 16, v22")
        e(f"v_lshlrev_b32 v22, 16, v{Y+j}"); e(f"v_and_b32 v23, 0xffff0000, v{Y+j}")
        e("v_pk_add_f32 v[20:21], v[20:21], v[22:23]"); e("v_cvt_pk_bf16_f32 v20, v20, v21")
        e("v_and_b32 v21, 0xffff0000, v20"); e("v_lshlrev_b32 v20, 16, v20")
        e(f"v_pk_mul_f32 v[20:21], v[20:21], {V(g)}"); e("v_cvt_pk_bf16_f32 v20, v20, v21")
        e(f"v_and_b32 v{33+2*j}, 0xffff0000, v20"); e(f"v_lshlrev_b32 v{32+2*j}, 16, v20")
        e(f"v_sub_f32 v{g}, 1.0, v{g}"); e(f"v_sub_f32 v{g+1}, 1.0, v{g+1}"); e(f"v_cvt_pk_bf16_f32 v{g}, v{g}, v{g+1}")
        e(f"v_and_b32 v{g+1}, 0xffff0000, v{g}"); e(f"v_lshlrev_b32 v{g}, 16, v{g}")
    e("s_waitcnt lgkmcnt(0)")
    for j in range(8):
        a=ACC+2*j
        e(f"v_pk_add_f32 {V(a)}, {V(a)}, {V(a+16)}"); e(f"v_pk_add_f32 {V(a+32)}, {V(a+32)}, {V(a+48)}")
        e(f"v_pk_add_f32 {V(a)}, {V(a)}, {V(a+32)}"); e(f"v_pk_add_f32 {V(a)}, {V(a)}, {V(X+2*j)}")
        e(f"v_pk_fma_f32 {V(a)}, {V(a)}, {V(G+2*j)}, {V(32+2*j)}")
        for r in range(2): e(f"buffer_store_dword v{a+r}, v{14+par(j)}, {S(80)}, s{92+j} offen offset:{2048*r}")
    lab("K2_END")
    e("s_endpgm")
```

```python
import sys
from common import *
import k1gemm, k1conv, k2
N="gated_mix__ssm_conv_s4d__ssm_conv_s5__prompt"
hdr=[l for l in open(f"cdna_kernels/{N}.s.ref").read().split("\n") if l.startswith(";") and "@launch" not in l and "Override" not in l and "grid=ceil" not in l]
L.extend(hdr)
L.append("; @launch kernel=stage1_kernel grid=(512,1,1) block=(256,1,1) lds=73728")
L.append(f"; @launch kernel={N}_kernel grid=(256,1,1) block=(256,1,1) lds=65536")
L.append('.amdgcn_target "amdgcn-amd-amdhsa--gfx950"'); L.append(".text")
def start(n):
    L.extend([f".globl {n}",".p2align 8",f".type {n},@function",f"{n}:"])
start("stage1_kernel")
e("s_cmp_ge_u32 s2, 512"); e("s_cbranch_scc0 K1_GO"); e("s_endpgm"); lab("K1_GO")
load_ptrs(); lane_bits()
e("s_cmp_ge_u32 s2, 256"); e("s_cbranch_scc1 K1_CONV")
k1gemm.gen(); k1conv.gen()
start(N+"_kernel"); k2.gen()
L.append('.section .rodata,"a"')
def desc(n,vg,acc):
    L.extend([".p2align 6",f".amdhsa_kernel {n}",f"  .amdhsa_next_free_vgpr {vg}","  .amdhsa_next_free_sgpr 102",f"  .amdhsa_accum_offset {acc}",
    "  .amdhsa_group_segment_fixed_size 0","  .amdhsa_kernarg_size 160","  .amdhsa_user_sgpr_count 2","  .amdhsa_user_sgpr_kernarg_segment_ptr 1","  .amdhsa_system_sgpr_workgroup_id_x 1",".end_amdhsa_kernel"])
desc("stage1_kernel",256,256); desc(N+"_kernel",512,256)
open(sys.argv[1] if len(sys.argv)>1 else f"cdna_kernels/{N}.s","w").write("\n".join(L)+"\n")
```

```python
L=[]
def e(s): L.append("    "+s)
def lab(s): L.append(s+":")
def cm(s): L.append("    ; "+s)
WS_H=0; WS_C=4<<20; WS_Y=5<<20; WS_G=7<<20; WS_E=(7<<20)+65536
WS_FH=(7<<20)+0x40000; WS_FY=WS_FH+0x2000; WS_FC=WS_FH+0x4000; WS_XT=10<<20; WSSZ=0x1000000
NON=99
LOG2E="0x3fb8aa3b"; INV2PI="0x3e22f983"
def srd(d, base, nbytes, off=None):
    if off is None:
        e(f"s_mov_b32 s{d}, s{base}"); e(f"s_mov_b32 s{d+1}, s{base+1}")
    else:
        e(f"s_add_u32 s{d}, s{base}, {off}"); e(f"s_addc_u32 s{d+1}, s{base+1}, 0")
    e(f"s_mov_b32 s{d+2}, {nbytes}"); e(f"s_mov_b32 s{d+3}, 0x20000")
def S(d): return f"s[{d}:{d+3}]"
def V(a,n=2): return f"v[{a}:{a+n-1}]"
def A(a,n=4): return f"a[{a}:{a+n-1}]"
def cmul(d,a,b):
    e(f"v_pk_mul_f32 {V(d)}, {V(a)}, {V(b)} op_sel:[0,0] op_sel_hi:[0,1]")
    e(f"v_pk_fma_f32 {V(d)}, {V(a)}, {V(b)}, {V(d)} op_sel:[1,1,0] op_sel_hi:[1,0,1] neg_lo:[0,1,0]")
def cfma(d,a,b,c):
    e(f"v_pk_fma_f32 {V(d)}, {V(a)}, {V(b)}, {V(c)} op_sel:[0,0,0] op_sel_hi:[0,1,1]")
    e(f"v_pk_fma_f32 {V(d)}, {V(a)}, {V(b)}, {V(d)} op_sel:[1,1,0] op_sel_hi:[1,0,1] neg_lo:[0,1,0]")
def cexp(d,a2,brev,k,t):
    e(f"v_mul_f32 v{t}, {k}, v{a2}"); e(f"v_mul_f32 v{t+1}, {k}, v{brev}")
    e(f"v_exp_f32 v{t}, v{t}"); e(f"v_fract_f32 v{t+1}, v{t+1}")
    e(f"v_cos_f32 v{d}, v{t+1}"); e(f"v_sin_f32 v{d+1}, v{t+1}"); e("s_nop 0")
    e(f"v_mul_f32 v{d}, v{t}, v{d}"); e(f"v_mul_f32 v{d+1}, v{t}, v{d+1}")
def bfr(d,s):
    e(f"v_cvt_pk_bf16_f32 v{d}, v{s}, v{s}"); e(f"v_and_b32 v{d}, 0xffff0000, v{d}")
def expbf(d,s):
    e(f"v_mul_f32 v{d}, {LOG2E}, v{s}"); e(f"v_exp_f32 v{d}, v{d}"); e("s_nop 0"); bfr(d,d)
def fl(x):
    import struct
    return "0x%08x"%struct.unpack("<I",struct.pack("<f",x))[0]
def load_ptrs():
    e("s_load_dwordx16 s[16:31], s[0:1], 0"); e("s_load_dwordx16 s[32:47], s[0:1], 64"); e("s_load_dwordx8 s[48:55], s[0:1], 128")
def lane_bits():
    e("v_lshrrev_b32 v4, 6, v0"); e("v_and_b32 v1, 63, v0"); e("v_readfirstlane_b32 s3, v4")
    e("v_lshrrev_b32 v2, 5, v1"); e("v_and_b32 v3, 31, v1")
    e("v_bfe_u32 v4, v1, 1, 1"); e("v_bfe_u32 v5, v1, 3, 2"); e("v_lshl_or_b32 v4, v5, 1, v4")
    e("v_lshrrev_b32 v5, 2, v1"); e("v_lshrrev_b32 v6, 3, v1"); e("v_xor_b32 v5, v5, v6")
    e("v_lshrrev_b32 v6, 4, v1"); e("v_xor_b32 v5, v5, v6"); e("v_and_b32 v5, 1, v5")
import os
STAMP=os.environ.get("STAMP")=="1"
STV=[255]
def stamp_mv(n):
    if STAMP: e(f"v_mov_b32 v{n}, v{STV[0]}")
    STV[0]=n
def stamp(i):
    if STAMP:
        e("s_memrealtime s[100:101]"); e("s_waitcnt lgkmcnt(0)"); e(f"v_writelane_b32 v{STV[0]}, s100, {i}")
def stamp_end(i,base):
    if STAMP:
        e("s_waitcnt vmcnt(0)"); stamp(i); e(f"v_mov_b32 v255, v{STV[0]}")
        e("s_getreg_b32 s100, hwreg(HW_REG_HW_ID)"); e("s_getreg_b32 s101, hwreg(HW_REG_XCC_ID)"); e("v_writelane_b32 v255, s100, 14"); e("v_writelane_b32 v255, s101, 15")
        srd(92,54,0x1000000)
        e("s_lshl_b32 s100, s2, 2"); e("s_add_u32 s100, s100, s3"); e("s_lshl_b32 s100, s100, 6"); e(f"s_add_u32 s100, s100, {base}")
        e("v_and_b32 v254, 63, v0"); e("v_lshlrev_b32 v254, 2, v254"); e("s_mov_b64 exec, 0xffff")
        e("buffer_store_dword v255, v254, s[92:95], s100 offen")

def nonce_issue(v,sr):
    e(f"v_mov_b32 v{v}, 0"); e(f"buffer_load_dword v{v}, v{v}, {S(sr)}, 0 offen sc1")
def nonce_check(v,sr,nm):
    lab(nm+"_NL"); e(f"v_readfirstlane_b32 s{NON}, v{v}"); e(f"s_cmp_lg_u32 s{NON}, 0"); e(f"s_cbranch_scc1 {nm}_NOK")
    e("s_sleep 2"); nonce_issue(v,sr); e("s_waitcnt vmcnt(0)"); e(f"s_branch {nm}_NL"); lab(nm+"_NOK")
def flag_check(v,va,sr,so,nm):
    lab(nm+"_FL"); e(f"v_cmp_ne_u32 vcc, s{NON}, v{v}"); e("s_nop 4"); e(f"s_cbranch_vccz {nm}_FOK")
    e(f"buffer_load_dword v{v}, v{va}, {S(sr)}, {so} offen sc1"); e("s_waitcnt vmcnt(0)"); e(f"s_branch {nm}_FL"); lab(nm+"_FOK")
def flag_store(vt,sr,so):
    e(f"v_mov_b32 v{vt}, s{NON}"); e(f"v_lshlrev_b32 v{vt+1}, 24, v1"); e(f"buffer_store_dword v{vt}, v{vt+1}, {S(sr)}, {so} offen sc1")
```

```python
from common import *
UB=19360; BS=2208; TB=8704
def gen():
    lab("K1_CONV")
    e("s_and_b32 s4, s2, 7"); e("s_lshl_b32 s4, s4, 5"); e("s_lshr_b32 s8, s2, 3"); e("s_add_u32 s4, s4, s8")
    e("s_lshr_b32 s6, s3, 1"); e("s_and_b32 s7, s3, 1"); e("s_lshl_b32 s5, s4, 1"); e("s_add_u32 s5, s5, s6")
    e("s_lshl_b32 s8, s4, 9"); e("v_lshl_add_u32 v6, v0, 1, s8")
    e("s_lshl_b32 s8, s5, 1"); e("v_mov_b32 v7, s8")
    e("s_and_b32 s8, s4, 31"); e("s_lshl_b32 s8, s8, 16"); e("s_lshr_b32 s9, s4, 5"); e("s_lshl_b32 s9, s9, 7"); e("s_add_u32 s13, s8, s9")
    e("v_lshrrev_b32 v9, 5, v0"); e("v_lshlrev_b32 v8, 11, v3"); e("v_lshl_add_u32 v8, v9, 4, v8")
    e("s_waitcnt lgkmcnt(0)")
    srd(76,16,2097152); srd(88,52,256)
    e(f"buffer_load_dwordx4 v[200:203], v8, {S(76)}, s13 offen"); e(f"buffer_load_dwordx4 v[204:207], v8, {S(76)}, s13 offen offset:1024")
    e("s_or_b32 s8, s2, s3"); e("s_cmp_lg_u32 s8, 0"); e("s_cbranch_scc1 C_NW")
    e(f"s_or_b32 s{NON}, s96, 1"); flag_store(14,88,"0")
    lab("C_NW")
    srd(56,18,131072); srd(60,20,131072); srd(64,22,131072); srd(68,24,131072); srd(72,26,1024)
    for i in range(4): e(f"buffer_load_ushort v{20+i}, v6, {S(56+4*i)}, 0 offen")
    e(f"buffer_load_ushort v24, v7, {S(72)}, 0 offen")
    srd(80,40,524288); srd(84,42,524288); srd(72,48,1024); srd(92,54,WSSZ)
    e("s_lshr_b32 s8, s4, 4"); e("s_lshl_b32 s8, s8, 15"); e("s_and_b32 s9, s4, 15"); e("s_lshl_b32 s9, s9, 6"); e("s_add_u32 s8, s8, s9")
    e("s_lshl_b32 s9, s3, 4"); e("s_add_u32 s8, s8, s9")
    e("v_lshlrev_b32 v14, 10, v3"); e("v_lshl_add_u32 v14, v2, 3, v14")
    e(f"buffer_load_dwordx2 v[208:209], v14, {S(80)}, s8 offen"); e(f"buffer_load_dwordx2 v[210:211], v14, {S(84)}, s8 offen")
    e("s_lshl_b32 s8, s4, 13"); e("s_lshl_b32 s9, s3, 11"); e("s_add_u32 s8, s8, s9"); e("v_lshlrev_b32 v14, 4, v1")
    e(f"buffer_load_dwordx4 v[212:215], v14, {S(76)}, s8 offen"); e(f"buffer_load_dwordx4 v[216:219], v14, {S(76)}, s8 offen offset:1024")
    e(f"buffer_load_dwordx4 v[220:223], v14, {S(72)}, 0 offen")
    nonce_issue(25,88)
    e("s_andn2_b32 s8, s4, 31"); e("s_lshl_b32 s8, s8, 14"); e("s_and_b32 s9, s4, 31"); e("s_lshl_b32 s9, s9, 9"); e("s_add_u32 s13, s8, s9"); e(f"s_add_u32 s13, s13, {WS_XT}")
    e("v_lshlrev_b32 v8, 16, v9"); e("v_lshl_add_u32 v8, v3, 4, v8")
    e("s_mov_b32 s14, 0x05040100"); e("s_mov_b32 s15, 0x07060302")
    for c in range(4):
        e(f"v_add_u32 v14, {c}, v0"); e("v_lshrrev_b32 v15, 6, v14"); e("v_and_b32 v14, 63, v14")
        e(f"v_mul_u32_u24 v15, {BS}, v15"); e(f"v_lshl_add_u32 v{10+c}, v14, 2, v15")
    e("v_lshrrev_b32 v14, 2, v3"); e("v_and_b32 v15, 3, v3"); e("v_and_b32 v16, 3, v14")
    e("v_mul_u32_u24 v14, 272, v14"); e("v_lshl_add_u32 v14, v15, 2, v14"); e("v_cmp_lt_u32 vcc, v15, v16")
    for i in range(4): e(f"v_mov_b32 v{224+i}, 0")
    e("s_and_saveexec_b64 s[10:11], vcc"); e(f"ds_write_b32 v14, v224 offset:{UB+7*BS}"); e("s_mov_b64 exec, s[10:11]")
    e(f"s_mul_i32 s12, s3, {TB}"); e("v_lshl_add_u32 v16, v1, 2, s12")
    e("v_mul_u32_u24 v17, 272, v3"); e("v_lshl_add_u32 v17, v2, 4, v17"); e("v_add_u32 v17, s12, v17")
    stamp(1); e("s_waitcnt vmcnt(0)"); nonce_check(25,88,"C"); stamp(2)
    for k in range(4):
        t=228+4*k
        e(f"v_perm_b32 v{t}, v{204+k}, v{200+k}, s14"); e(f"v_mov_b32 v{t+1}, s{NON}"); e(f"v_perm_b32 v{t+2}, v{204+k}, v{200+k}, s15"); e(f"v_mov_b32 v{t+3}, s{NON}")
        e(f"buffer_store_dwordx4 {V(t,4)}, v8, {S(92)}, s13 offen sc1"); e("s_add_u32 s13, s13, 16384")
    e("v_perm_b32 v244, v210, v208, s14"); e("v_perm_b32 v245, v210, v208, s15"); e("v_perm_b32 v246, v211, v209, s14"); e("v_perm_b32 v247, v211, v209, s15")
    e("s_lshl_b32 s8, s4, 12"); e(f"s_add_u32 s8, s8, {WS_C}"); e("v_lshlrev_b32 v9, 4, v0")
    e(f"buffer_store_dwordx4 v[244:247], v9, {S(92)}, s8 offen sc1")
    for r in range(20,25): e(f"v_lshlrev_b32 v{r}, 16, v{r}")
    expbf(24,24); expbf(20,20)
    e("v_mul_f32 v20, v20, v24"); e("v_mul_f32 v21, v21, v24")
    e(f"v_mul_f32 v20, {fl(-1.4426950408889634)}, v20"); e(f"v_mul_f32 v21, {INV2PI}, v21")
    e("v_add_f32 v24, v24, v24"); e("v_mul_f32 v22, v22, v24"); e("v_mul_f32 v23, v23, v24")
    Z8,Z16,Z1,Z2,Z4,Z256=26,28,30,32,34,36
    cexp(Z8,20,21,fl(8),18); cexp(Z16,20,21,fl(16),18)
    tmp=[60]
    def put(row,r,neg):
        t=tmp[0]; tmp[0]=60+(t-59)%4
        e(f"v_cvt_pk_bf16_f32 v{t}, v{r}, {'-' if neg else ''}v{r+1}"); e(f"ds_write_b32 v16, v{t} offset:{272*row}")
    e("v_mov_b32 v60, 0x3f80"); e("ds_write_b32 v16, v60"); tmp[0]=61
    put(1,Z8,0); put(2,Z16,0)
    ev,od=Z16,Z8
    for c in range(3,32):
        if c%2: n=40+((c>>1)%2)*2; cmul(n,od,Z16); od=n
        else:   n=44+((c>>1)%2)*2; cmul(n,ev,Z16); ev=n
        put(c,n,0)
    GF=128; RF=160
    for s in range(8): e(f"ds_read_b128 {V(GF+4*s,4)}, v17 offset:{32*s}")
    e("s_lshl_b32 s8, s4, 4"); e("s_lshl_b32 s9, s3, 2"); e("s_add_u32 s8, s8, s9"); e(f"s_add_u32 s8, s8, {WS_FC}")
    e("s_waitcnt vmcnt(0)"); flag_store(18,92,"s8")
    e("s_lshl_b32 s98, s4, 14"); e(f"s_add_u32 s98, s98, {WS_XT}"); e("v_add_u32 v8, 8192, v9")
    def xtl():
        for q in range(4): e(f"buffer_load_dwordx4 {V(228+4*q,4)}, v{9 if q<2 else 8}, {S(92)}, s98 offen offset:{(q&1)*4096-(q&1)*16 if 0 else 0} sc1") if not (q&1) else e(f"buffer_load_dwordx4 {V(228+4*q,4)}, v{9 if q<2 else 8}, {S(92)}, s97 offen sc1")
    e("s_add_u32 s97, s98, 4096")
    cexp(Z1,20,21,"1.0",18); cexp(Z2,20,21,"2.0",18); cexp(Z4,20,21,"4.0",18); cexp(Z256,20,21,fl(256),18)
    def row(h,reg): return (reg&3)+4*h+8*(reg>>2)
    for k in range(1,8): cmul(64+2*k, 22 if k==1 else 62+2*k, Z256)
    e("s_waitcnt lgkmcnt(0)")
    put(row(0,0),22,1); cmul(40,22,Z1); put(row(0,1),40,1)
    ev,od=22,40
    for j in range(2,8):
        if j%2: n=42 if od!=42 else 40; cmul(n,od,Z2); od=n
        else:   n=44 if ev!=44 else 46; cmul(n,ev,Z2); ev=n
        put(row(0,j),n,1)
    put(row(0,8),66,1); cmul(40,66,Z2); put(row(0,9),40,1); cmul(42,66,Z4); put(row(0,10),42,1)
    cmul(44,40,Z4); put(row(0,11),44,1); cmul(46,66,Z8); put(row(0,12),46,1)
    for (h,r0,b) in ((0,13,68),(1,0,70)):
        put(row(h,r0),b,1); cmul(40,b,Z4); put(row(h,r0+1),40,1); cmul(42,b,Z8); put(row(h,r0+2),42,1)
    for k in range(4):
        put(row(1,3+2*k),72+2*k,1); cmul(44+2*(k%2),72+2*k,Z8); put(row(1,4+2*k),44+2*(k%2),1)
    for s in range(8): e(f"ds_read_b128 {V(RF+4*s,4)}, v17 offset:{32*s}")
    D=64; stamp(3)
    for s in range(8):
        e(f"s_waitcnt lgkmcnt({7-s})")
        e(f"v_mfma_f32_32x32x16_bf16 {V(D,16)}, {V(RF+4*s,4)}, {V(GF+4*s,4)}, {'0' if s==0 else V(D,16)}")
    xtl()
    def uput(q):
        for c in range(4):
            e(f"ds_write_b32 v{10+c}, v{228+4*q} offset:{UB+(7+4*q)*BS+272*c}"); e(f"ds_write_b32 v{10+c}, v{230+4*q} offset:{UB+(7+4*q)*BS+272*(4+c)}")
    e("v_lshl_add_u32 v16, v1, 4, s12"); e("s_xor_b32 s13, s3, 1"); e(f"s_mul_i32 s13, s13, {TB}"); e("v_lshl_add_u32 v17, v1, 4, s13")
    e("s_nop 7")
    for k in range(4): e(f"ds_write_b128 v16, {V(D+4*k,4)} offset:{1024*k}")
    e("s_waitcnt lgkmcnt(0)"); e("s_barrier")
    for k in range(4): e(f"ds_read_b128 {V(80+4*k,4)}, v17 offset:{1024*k}")
    e("s_waitcnt lgkmcnt(0)"); e("s_barrier")
    for k in range(8): e(f"v_pk_add_f32 {V(D+2*k)}, {V(D+2*k)}, {V(80+2*k)}")
    e("v_lshlrev_b32 v16, 4, v0")
    for k in range(3): e(f"ds_write_b128 v16, v[224:227] offset:{UB+4096*k}")
    e("v_min_u32 v16, 3152, v16"); e(f"ds_write_b128 v16, v[224:227] offset:{UB+12288}")
    e("s_mul_i32 s12, s6, 8960"); e("s_mul_i32 s13, s7, 4480"); e("s_add_u32 s13, s13, s12")
    e("v_and_b32 v16, 15, v1"); e("v_lshl_add_u32 v16, v16, 4, s13"); e("ds_write_b128 v16, v[224:227] offset:4096")
    e("v_sub_u32 v16, 31, v3"); e("v_lshl_add_u32 v16, v16, 4, s13")
    e("v_and_b32 v17, 1, v1"); e("v_cmp_eq_u32 vcc, 1, v17"); e("s_nop 1")
    def chunk(kb,el,r):
        for q in range(4):
            hi=6+r-2*q
            e(f"v_cvt_pk_bf16_f32 v{80+q}, v{el[hi]}, v{el[hi-1]}")
        e(f"ds_write_b128 v16, v[80:83] offset:{512*(7-kb)}"); e("s_nop 0")
    def els(lst,prev):
        d={i:x for i,x in enumerate(lst)}; d[-1]=prev; return d
    def r2(b): return els([b,b,b,b+1,b+1,b+1,b+2,b+2],b)
    for k in range(4): e(f"v_cndmask_b32 v{84+k}, v{D+3+2*k}, v{D+4+2*k}, vcc")
    e("s_cmp_eq_u32 s7, 0"); e("s_cbranch_scc1 C_R0")
    for r in (1,0):
        if r==0: lab("C_R0")
        e("s_mov_b32 exec_hi, 0")
        chunk(0,els([D+i for i in range(8)],224),r)
        chunk(1,els([D+8,D+8,D+9,D+10,D+10,D+10,D+11,D+12],D+8),r)
        chunk(2,r2(D+13),r)
        if r==0:
            e(f"v_cvt_pk_bf16_f32 v80, v{D+7}, v{D+7}"); e(f"ds_write_b16 v16, v80 offset:{512*7-2}")
        e("s_mov_b32 exec_hi, -1"); e("s_mov_b32 exec_lo, 0")
        chunk(3,r2(D),r)
        for k in range(4):
            a=D+3+2*k; chunk(4+k,els([a,a,a,a,84+k,a+1,a+1,a+1],a),r)
        e("s_mov_b32 exec_lo, -1")
        if r==1: e("s_branch C_RD")
    lab("C_RD")
    stamp(4)
    for rr in range(2):
        for i in range(4):
            x=212+4*rr+i
            e(f"v_lshlrev_b32 v84, 16, v{x}"); e(f"v_and_b32 v85, 0xffff0000, v{x}")
            e(f"v_lshlrev_b32 v86, 16, v{220+i}"); e(f"v_and_b32 v87, 0xffff0000, v{220+i}")
            e("v_pk_mul_f32 v[84:85], v[84:85], v[86:87]"); e("v_cvt_pk_bf16_f32 v84, v84, v85")
            e("v_and_b32 v85, 0xffff0000, v84"); e("v_lshlrev_b32 v84, 16, v84")
            if i==0: e(f"v_add_f32 v{88+rr}, v84, v85")
            else: e(f"v_add_f32 v{88+rr}, v{88+rr}, v84"); e(f"v_add_f32 v{88+rr}, v{88+rr}, v85")
    for md in ("row_shr:1","row_shr:2","row_shr:4","row_shr:8","row_bcast:15 row_mask:0xa","row_bcast:31 row_mask:0xc"):
        e("s_nop 0")
        for rr in range(2): e(f"v_add_f32_dpp v{88+rr}, v{88+rr}, v{88+rr} {md}")
    for rr in range(2):
        bfr(88+rr,88+rr); e(f"v_mul_f32 v{88+rr}, {fl(-1.4426950408889634)}, v{88+rr}"); e(f"v_exp_f32 v{88+rr}, v{88+rr}"); e("s_nop 0")
        e(f"v_add_f32 v{88+rr}, 1.0, v{88+rr}"); e(f"v_rcp_f32 v{88+rr}, v{88+rr}"); e("s_nop 0")
    e("v_cvt_pk_bf16_f32 v88, v88, v89"); e(f"v_mov_b32 v89, s{NON}")
    e("s_lshr_b32 s8, s4, 3"); e("s_lshr_b32 s9, s4, 1"); e("s_xor_b32 s8, s8, s9"); e("s_lshr_b32 s9, s4, 2"); e("s_xor_b32 s8, s8, s9"); e("s_and_b32 s8, s8, 1"); e("s_lshl_b32 s8, s8, 6")
    e("s_and_b32 s9, s4, 7"); e("s_lshl_b32 s9, s9, 3"); e("s_add_u32 s8, s8, s9")
    e("s_lshr_b32 s9, s4, 4"); e("s_lshl_b32 s9, s9, 9"); e("s_add_u32 s8, s8, s9")
    e("s_sub_u32 s9, 3, s3"); e("s_lshl_b32 s9, s9, 7"); e("s_add_u32 s8, s8, s9"); e(f"s_add_u32 s8, s8, {WS_G}")
    e("v_cmp_eq_u32 vcc, 63, v1"); e("v_mov_b32 v18, 0x7ffffff0"); e("s_nop 0"); e("v_cndmask_b32 v18, v18, v224, vcc")
    e(f"buffer_store_dwordx2 v[88:89], v18, {S(92)}, s8 offen sc1")
    stamp(5); e("s_waitcnt vmcnt(1)")
    lab("C_XL")
    e(f"v_xor_b32 v18, s{NON}, v229")
    for r in range(231,244,2): e(f"v_xor_b32 v19, s{NON}, v{r}"); e("v_or_b32 v18, v18, v19")
    e("v_cmp_ne_u32 vcc, 0, v18"); e("s_nop 4"); e("s_cbranch_vccz C_XOK")
    xtl(); e("s_waitcnt vmcnt(0)"); e("s_branch C_XL")
    lab("C_XOK"); stamp(6)
    for q in range(4): uput(q)
    e("v_lshl_or_b32 v18, v5, 3, v4"); e("v_sub_u32 v18, v2, v18"); e("v_add_u32 v18, 15, v18"); e("v_and_b32 v19, 1, v1"); e("v_mul_u32_u24 v19, 4480, v19")
    e("v_lshl_add_u32 v20, v18, 4, v19"); e("s_xor_b32 s9, s7, 1"); e("s_lshl_b32 s8, s9, 10"); e("s_add_u32 s8, s8, s12"); e("v_add_u32 v20, s8, v20")
    e("v_and_b32 v18, 3, v1"); e("v_bfe_u32 v19, v1, 3, 1"); e("v_lshl_or_b32 v22, v19, 2, v18")
    e("v_bfe_u32 v19, v1, 4, 1"); e("v_lshl_or_b32 v23, v5, 1, v19")
    e(f"v_mul_u32_u24 v18, {BS}, v22"); e("v_mul_u32_u24 v19, 272, v23"); e("v_add_u32 v18, v18, v19"); e("v_lshl_add_u32 v21, v2, 4, v18")
    e(f"s_mul_i32 s8, s9, {4*BS}"); e("s_mul_i32 s9, s6, 1088"); e("s_add_u32 s8, s8, s9"); e("v_add_u32 v21, s8, v21")
    e("s_waitcnt lgkmcnt(0)"); e("s_barrier")
    stamp(8); T0,T1,F=64,80,96; NB=3
    def rd(s):
        f=F+16*(s%NB)
        ob=UB+(3-(s>>3))*BS+224-32*(s&7)
        e(f"ds_read_b128 {V(f,4)}, v20 offset:{3040-32*s}"); e(f"ds_read_b128 {V(f+4,4)}, v21 offset:{ob}")
        e(f"ds_read_b128 {V(f+8,4)}, v21 offset:{ob+8*BS}"); e(f"ds_read_b128 {V(f+12,4)}, v20 offset:{992-32*s}")
    rd(0); rd(1)
    for s in range(32):
        f=F+16*(s%NB)
        if s+2<32: rd(s+2); e("s_waitcnt lgkmcnt(8)")
        else: e(f"s_waitcnt lgkmcnt({4 if s==30 else 0})")
        e(f"v_mfma_f32_32x32x16_bf16 {V(T0,16)}, {V(f,4)}, {V(f+4,4)}, {'0' if s==0 else V(T0,16)}")
        e(f"v_mfma_f32_32x32x16_bf16 {V(T1,16)}, {V(f,4)}, {V(f+8,4)}, {'0' if s==0 else V(T1,16)}")
        e(f"v_mfma_f32_32x32x16_bf16 {V(T1,16)}, {V(f+12,4)}, {V(f+4,4)}, {V(T1,16)}")
    stamp(9); e("s_barrier")
    e("s_lshl_b32 s8, s3, 12"); e("v_lshl_add_u32 v16, v1, 4, s8"); e("v_xor_b32 v17, 4096, v16")
    e("s_lshl_b32 s8, s5, 12"); e("s_lshl_b32 s9, s7, 11"); e("s_add_u32 s8, s8, s9"); e(f"s_add_u32 s8, s8, {WS_Y}")
    e("v_lshl_or_b32 v18, v22, 2, v23"); e("v_lshl_or_b32 v18, v18, 1, v2"); e("v_lshlrev_b32 v18, 5, v18")
    e("s_nop 3"); e("s_cmp_eq_u32 s7, 0"); e("s_cbranch_scc1 C_F0")
    for ww in (1,0):
        if ww==0: lab("C_F0")
        keep,send=(T1,T0) if ww else (T0,T1)
        for k in range(4): e(f"ds_write_b128 v16, {V(send+4*k,4)} offset:{1024*k}")
        e("s_waitcnt lgkmcnt(0)"); e("s_barrier")
        for k in range(4): e(f"ds_read_b128 {V(96+4*k,4)}, v17 offset:{1024*k}")
        e("s_waitcnt lgkmcnt(0)")
        for k in range(8):
            e(f"v_pk_add_f32 {V(96+2*k)}, {V(96+2*k)}, {V(keep+2*k)}"); e(f"v_cvt_pk_bf16_f32 v{112+k}, v{96+2*k}, v{97+2*k}")
        e(f"buffer_store_dwordx4 v[112:115], v18, {S(92)}, s8 offen sc1"); e(f"buffer_store_dwordx4 v[116:119], v18, {S(92)}, s8 offen offset:16 sc1")
        e("s_lshl_b32 s8, s5, 2"); e(f"s_add_u32 s8, s8, {WS_FY+2048*ww}"); e("s_waitcnt vmcnt(0)"); flag_store(18,92,"s8")
        stamp_end(10,8<<20); e("s_endpgm")
```

```python
from common import *
def gen():
    lab("K1_GEMM"); stamp_mv(63)
    e("s_and_b32 s6, s2, 7"); e("s_bfe_u32 s7, s2, 0x50003")
    e("s_lshr_b32 s4, s6, 1"); e("s_lshl_b32 s4, s4, 2"); e("s_and_b32 s8, s7, 3"); e("s_add_u32 s4, s4, s8")
    e("s_and_b32 s5, s6, 1"); e("s_lshl_b32 s5, s5, 3"); e("s_lshr_b32 s8, s7, 2"); e("s_add_u32 s5, s5, s8")
    e("s_bfe_u32 s88, s7, 0x10002"); e("s_and_b32 s89, s6, 1"); e("s_lshl_b32 s89, s89, 2"); e("s_lshr_b32 s9, s7, 3"); e("s_add_u32 s89, s89, s9")
    e("s_and_b32 s90, s7, 3"); e("s_lshl_b32 s90, s90, 1"); e("s_add_u32 s90, s90, s8"); e("s_lshl_b32 s90, s90, 7")
    e("v_lshrrev_b32 v6, 3, v1"); e("v_and_b32 v7, 7, v1")
    e("v_bfe_u32 v8, v6, 1, 1")
    e("v_xor_b32 v7, v7, v8")
    e("v_and_b32 v9, 1, v6"); e("v_lshl_or_b32 v9, v9, 3, v8")
    e("v_lshrrev_b32 v10, 2, v6"); e("v_lshl_or_b32 v9, v10, 4, v9")
    e("s_lshl_b32 s8, s3, 5"); e("v_add_u32 v9, s8, v9")
    for q in range(4):
        e(f"v_xor_b32 v10, {2*q}, v7"); e(f"v_lshlrev_b32 v10, 4, v10")
        e(f"v_add_u32 v11, {2*q}, v9"); e(f"v_lshl_add_u32 v{12+q}, v11, 10, v10")
    e("s_and_b32 s8, s3, 1"); e("s_lshl_b32 s9, s8, 2"); e("s_lshl_b32 s8, s8, 4")
    for qq in range(2):
        e(f"v_xor_b32 v10, s9, v7"); e(f"v_xor_b32 v10, {2*qq}, v10"); e("v_lshlrev_b32 v10, 4, v10")
        e(f"v_add3_u32 v11, s8, v6, {8*qq}"); e(f"v_lshl_add_u32 v{16+qq}, v11, 10, v10")
    e("s_waitcnt lgkmcnt(0)")
    e("s_lshl_b32 s8, s4, 17"); srd(56,16,131072,"s8")
    e("s_cmp_lt_u32 s3, 2"); e("s_cselect_b32 s10, s36, s38"); e("s_cselect_b32 s11, s37, s39")
    e("s_lshl_b32 s8, s5, 15"); srd(60,10,32768,"s8")
    srd(64,32,1024); srd(68,34,1024); srd(72,44,1024)
    e("s_lshl_b32 s8, s5, 13"); e(f"s_add_u32 s8, s8, {WS_E}"); srd(76,54,8192,"s8")
    srd(80,52,256)
    e("s_lshl_b32 s8, s4, 18"); srd(84,54,262144,"s8")
    e("s_lshl_b32 s8, s5, 6"); e("v_lshl_add_u32 v10, v3, 1, s8")
    e(f"buffer_load_ushort v20, v10, {S(64)}, 0 offen"); e(f"buffer_load_ushort v21, v10, {S(68)}, 0 offen"); e(f"buffer_load_ushort v22, v10, {S(72)}, 0 offen")
    e("s_lshl_b32 s8, s4, 9"); e("v_lshl_add_u32 v18, v3, 4, s8"); e("v_mov_b32 v10, 0x7ffffff0")
    e("v_cmp_lt_u32 vcc, 223, v0"); e("v_mov_b32 v24, 0"); e("v_mov_b32 v25, 0"); e("v_cndmask_b32 v18, v10, v18, vcc")
    e("v_mov_b32 v26, 0"); e("v_mov_b32 v27, 0")
    srd(92,54,WSSZ)
    e("s_lshl_b32 s13, s3, 12"); e("s_lshl_b32 s14, s3, 11"); e("s_add_u32 s14, s14, 16384")
    def dma(st):
        b=(st%3)*24576
        e(f"s_add_u32 s15, s90, {128*st}"); e("s_and_b32 s15, s15, 1023")
        for q in range(4):
            e(f"s_add_u32 m0, s13, {b+1024*q}"); e("s_nop 0"); e(f"buffer_load_dwordx4 v{12+q}, {S(56)}, s15 offen lds")
        for q in range(2):
            e(f"s_add_u32 m0, s14, {b+1024*q}"); e("s_nop 0"); e(f"buffer_load_dwordx4 v{16+q}, {S(60)}, s15 offen lds")
    for st in range(3): dma(st)
    for s in range(4):
        e(f"v_or_b32 v10, {2*s}, v2"); e("v_xor_b32 v10, v10, v4"); e("v_lshlrev_b32 v10, 4, v10")
        e(f"v_lshl_add_u32 v{28+s}, v3, 7, v10"); e(f"v_add_u32 v{32+s}, s13, v{28+s}"); e(f"v_add_u32 v{28+s}, 16384, v{28+s}")
    stamp(1); e("s_waitcnt vmcnt(18)"); stamp(2)
    for r in (20,21,22): e(f"v_lshlrev_b32 v{r}, 16, v{r}")
    expbf(22,22)
    e("v_mul_f32 v36, v22, v20"); e("v_mul_f32 v37, v22, v21")
    e(f"v_mul_f32 v36, {LOG2E}, v36"); e(f"v_mul_f32 v37, {INV2PI}, v37")
    cexp(40,36,37,"1.0",38); cexp(42,36,37,fl(8),38); cexp(44,36,37,fl(128),38); cexp(46,36,37,fl(256),38)
    e("v_lshrrev_b32 v10, 5, v0"); e("v_lshlrev_b32 v10, 4, v10"); e("v_cvt_f32_u32 v10, v10")
    cexp(48,36,37,"v10",38)
    e("v_mul_f32 v38, v20, v20"); e("v_fmac_f32 v38, v21, v21"); e("v_rcp_f32 v38, v38")
    e("v_add_f32 v52, -1.0, v40"); e("v_mov_b32 v53, v41"); e("v_add_f32 v38, v38, v38")
    e("v_mul_f32 v54, v20, v38"); e("v_mul_f32 v55, v21, v38"); e("v_sub_f32 v55, 0, v55")
    cmul(50,52,54)
    RE=64; IM=80; FR=96
    e("v_bfe_u32 v19, v1, 4, 1"); e("v_and_b32 v10, 15, v1"); e("v_lshlrev_b32 v10, 2, v10"); e("v_lshl_add_u32 v19, v19, 8, v10")
    e("s_lshl_b32 s91, s89, 9"); e("s_lshl_b32 s8, s3, 6"); e("s_add_u32 s91, s91, s8"); e(f"s_add_u32 s91, s91, {WS_FC}")
    e("s_lshl_b32 s8, s89, 17"); e(f"s_add_u32 s8, s8, {WS_C}"); srd(64,54,131072,"s8")
    e("s_lshl_b32 s8, s3, 14"); e("v_lshl_add_u32 v6, v1, 4, s8"); e("v_add_u32 v7, 0x10000, v6")
    def CR(ks,nt): return (192 if ks<8 else 128-64)+8*ks+4*nt
    def cld(k0):
        for ks in range(k0,k0+8):
            if ks%4==0: e(f"s_mov_b32 s15, {1024*ks}")
            for nt in range(2): e(f"buffer_load_dwordx4 {V(CR(ks,nt),4)}, v{6+nt}, {S(64)}, s15 offen offset:{1024*(ks%4)} sc1")
    waits=[12,12,12,14,14,12,22,16]
    for k in range(8):
        b=(k%3)*24576
        e(f"s_waitcnt vmcnt({waits[k]})"); e("s_barrier")
        if k in (0,3,7): stamp({0:3,3:4,7:5}[k])
        for s in range(4):
            e(f"ds_read_b128 {V(FR+12*s,4)}, v{32+s} offset:{b}")
            e(f"ds_read_b128 {V(FR+12*s+4,4)}, v{28+s} offset:{b}")
            e(f"ds_read_b128 {V(FR+12*s+8,4)}, v{28+s} offset:{b+4096}")
        def mf(s):
            for (acc,o) in ((RE,4),(IM,8)):
                c="0" if (k==0 and s==0) else V(acc,16)
                e(f"v_mfma_f32_32x32x16_bf16 {V(acc,16)}, {V(FR+12*s,4)}, {V(FR+12*s+o,4)}, {c}")
        e("s_waitcnt lgkmcnt(9)"); mf(0); e("s_waitcnt lgkmcnt(6)"); mf(1)
        e("s_waitcnt lgkmcnt(0)")
        if k+3<8:
            e("s_barrier"); mf(2); dma(k+3)
            if k==2:
                nonce_issue(22,80); e(f"buffer_load_dword v23, v19, {S(92)}, s91 offen sc1")
            mf(3)
        else:
            mf(2); mf(3)
            if k==5: nonce_check(22,80,"G"); flag_check(23,19,92,"s91","GC"); cld(0)
    EB=49152
    e("s_nop 1"); e("v_lshlrev_b32 v56, 4, v0"); e(f"ds_write_b128 v56, v[24:27] offset:{EB}")
    e("v_lshrrev_b32 v56, 5, v0"); e("v_lshlrev_b32 v56, 9, v56"); e("v_lshl_add_u32 v56, v3, 3, v56")
    e("s_nop 7")
    def step(dr,di,pr,pi,t):
        e(f"v_pk_fma_f32 {V(dr)}, {V(40)}, {V(pr)}, {V(RE+2*t)} op_sel:[0,0,0] op_sel_hi:[0,1,1]")
        e(f"v_pk_fma_f32 {V(di)}, {V(40)}, {V(pi)}, {V(IM+2*t)} op_sel:[0,0,0] op_sel_hi:[0,1,1]")
        e(f"v_pk_fma_f32 {V(dr)}, {V(40)}, {V(pi)}, {V(dr)} op_sel:[1,0,0] op_sel_hi:[1,1,1] neg_lo:[1,0,0] neg_hi:[1,0,0]")
        e(f"v_pk_fma_f32 {V(di)}, {V(40)}, {V(pr)}, {V(di)} op_sel:[1,0,0] op_sel_hi:[1,1,1]")
    pr,pi=RE,IM
    for t in range(1,8):
        dr,di=(96,98) if t%2 else (100,102)
        step(dr,di,pr,pi,t); pr,pi=dr,di
    e("v_mov_b32 v58, v96"); e("v_mov_b32 v59, v98"); e("v_mov_b32 v60, v97"); e("v_mov_b32 v61, v99")
    e(f"ds_write_b64 v56, v[58:59] offset:{EB+4096}"); e(f"ds_write_b64 v56, v[60:61] offset:{EB+4096+256}")
    e("s_waitcnt lgkmcnt(0)"); e("s_barrier")
    for j in range(14): e(f"ds_read_b64 {V(96+2*j)}, v56 offset:{EB+512+256*j}")
    for j in range(1,14):
        e(f"s_waitcnt lgkmcnt({13-j})"); cfma(96+2*j,42,96+2*j-2,96+2*j)
    cfma(58,42,122,58); cfma(60,42,58,60)
    e("v_mov_b32 v24, v60"); e(f"v_mov_b32 v25, s{NON}"); e("v_mov_b32 v26, v61"); e(f"v_mov_b32 v27, s{NON}")
    e(f"buffer_store_dwordx4 v[24:27], v18, {S(76)}, 0 offen sc1")
    stamp(6)
    e("s_lshl_b32 s8, s4, 9"); e("s_sub_u32 s8, s8, 8192"); e("v_lshl_add_u32 v10, v1, 4, s8")
    for j in range(8):
        e(f"v_add_u32 v{12+j}, {1024*j}, v10")
    G=128
    def gl():
        for j in range(8): e(f"buffer_load_dwordx4 {V(G+4*j,4)}, v{12+j}, {S(76)}, 0 offen sc1")
    gl()
    for t in range(8):
        e(f"v_pk_mul_f32 {V(96)}, {V(50)}, {V(IM+2*t)} op_sel:[1,0] op_sel_hi:[1,1]")
        e(f"v_pk_mul_f32 {V(IM+2*t)}, {V(50)}, {V(IM+2*t)} op_sel:[0,0] op_sel_hi:[0,1]")
        e(f"v_pk_fma_f32 {V(IM+2*t)}, {V(50)}, {V(RE+2*t)}, {V(IM+2*t)} op_sel:[1,0,0] op_sel_hi:[1,1,1]")
        e(f"v_pk_fma_f32 {V(RE+2*t)}, {V(50)}, {V(RE+2*t)}, {V(96)} op_sel:[0,0,0] op_sel_hi:[0,1,1] neg_lo:[0,0,1] neg_hi:[0,0,1]")
    lab("G_POLL")
    e("s_waitcnt vmcnt(0)")
    e("v_mov_b32 v10, 0")
    for j in range(8):
        e(f"v_ashrrev_i32 v11, 31, v{12+j}"); e(f"v_xor_b32 v{G+4*j+1}, s{NON}, v{G+4*j+1}"); e(f"v_xor_b32 v{G+4*j+3}, s{NON}, v{G+4*j+3}")
        e(f"v_or_b32 v{G+4*j+1}, v{G+4*j+1}, v{G+4*j+3}"); e(f"v_bfi_b32 v11, v11, 0, v{G+4*j+1}"); e("v_or_b32 v10, v10, v11")
    e("v_cmp_ne_u32 vcc, 0, v10"); e("s_nop 4"); e("s_cbranch_vccz G_POLL_OK")
    gl(); e("s_branch G_POLL")
    lab("G_POLL_OK"); stamp(8)
    for j in range(8): e(f"v_mov_b32 v{G+4*j+1}, v{G+4*j+2}")
    for j in range(1,8): cfma(G+4*j,46,G+4*j-4,G+4*j)
    HX=G+28
    e(f"v_mov_b32 v96, v{HX}"); e(f"v_mov_b32 v97, v{HX+1}"); e("s_nop 1")
    e(f"v_permlane32_swap_b32 v96, v{HX}"); e(f"v_permlane32_swap_b32 v97, v{HX+1}"); e("s_nop 1")
    cfma(HX,44,96,HX)
    cmul(98,48,HX)
    e(f"v_pk_add_f32 {V(122)}, {V(122)}, {V(98)}")
    cfma(58,42,98,58)
    cmul(100,50,122); cmul(102,50,58)
    e("v_mov_b32 v96, v100"); e("v_mov_b32 v97, v102"); e("v_mov_b32 v98, v101"); e("v_mov_b32 v99, v103")
    e("v_lshrrev_b32 v56, 5, v0"); e("v_mul_u32_u24 v56, 2304, v56"); e("v_lshl_add_u32 v56, v3, 2, v56")
    pr,pi=96,98
    for t in range(8):
        dr,di=(104,106) if t%2==0 else (108,110)
        step(dr,di,pr,pi,t); pr,pi=dr,di
        e(f"v_cvt_pk_bf16_f32 v{112+2*(t%2)}, v{dr}, -v{di}"); e(f"v_cvt_pk_bf16_f32 v{113+2*(t%2)}, v{dr+1}, -v{di+1}")
        e(f"ds_write_b32 v56, v{112+2*(t%2)} offset:{144*t}"); e(f"ds_write_b32 v56, v{113+2*(t%2)} offset:{144*(t+8)}")
    e("v_lshl_or_b32 v10, v5, 3, v4"); e("v_and_b32 v11, 1, v1"); e("v_lshl_add_u32 v10, v10, 3, v11")
    e("s_lshl_b32 s8, s3, 1"); e("s_sub_u32 s8, 6, s8"); e("v_add_u32 v10, s8, v10")
    e("v_mul_u32_u24 v10, 144, v10"); e("v_lshl_add_u32 v10, v2, 4, v10")
    e("s_lshl_b32 s8, s3, 16"); e("s_lshl_b32 s9, s5, 12"); e("s_add_u32 s8, s8, s9"); e("v_lshlrev_b32 v11, 4, v1")
    e("s_waitcnt lgkmcnt(0)"); e("s_barrier")
    for k in range(4): e(f"ds_read_b128 {V(96+4*k,4)}, v10 offset:{32*k}")
    for k in range(4):
        e(f"s_waitcnt lgkmcnt({3-k})"); e(f"buffer_store_dwordx4 {V(96+4*k,4)}, v11, {S(84)}, s8 offen offset:{1024*k} sc1")
    cld(8)
    e("s_lshl_b32 s8, s4, 8"); e(f"s_add_u32 s8, s8, {WS_FH}"); e("s_lshl_b32 s9, s3, 6"); e("s_add_u32 s9, s9, s8"); e("s_lshl_b32 s10, s5, 2"); e("s_add_u32 s9, s9, s10")
    e("s_lshl_b32 s10, s88, 7"); e("s_add_u32 s91, s8, s10"); e("s_lshl_b32 s10, s3, 4"); e("s_add_u32 s91, s91, s10")
    e("v_bfe_u32 v9, v1, 2, 1"); e("v_and_b32 v10, 3, v1"); e("v_lshlrev_b32 v10, 2, v10"); e("v_lshl_add_u32 v9, v9, 6, v10")
    e("s_barrier"); stamp(9)
    e("s_waitcnt vmcnt(16)"); flag_store(10,92,"s9")
    e(f"buffer_load_dword v8, v9, {S(92)}, s91 offen sc1")
    import k2; k2.gen(CR)
```

```python
from common import *
def gen(CR):
    stamp_mv(5)
    e("s_mov_b32 s5, s88"); e("s_mov_b32 s6, s89")
    e("s_lshl_b32 s8, s4, 18"); e("s_lshl_b32 s9, s5, 17"); e("s_add_u32 s8, s8, s9"); srd(56,54,131072,"s8")
    srd(68,16,2097152); srd(72,28,1024); srd(76,46,1024); srd(80,50,4194304)
    e("s_mul_i32 s13, s3, 18432"); e("v_lshl_add_u32 v4, v1, 4, s13")
    e("s_waitcnt vmcnt(0)"); flag_check(8,9,92,"s91","GH"); stamp(10)
    for ks in range(16):
        if ks%4==0 or ks>=7: e(f"s_mov_b32 s15, {1024*ks}")
        o=1024*(ks%4) if ks<7 else 0
        for mt in range(2):
            if ks<7: e(f"buffer_load_dwordx4 {V(8+8*ks+4*mt,4)}, v{6+mt}, {S(56)}, s15 offen offset:{o} sc1")
            else:
                e(f"s_add_u32 m0, s13, {((ks-7)*2+mt)*1024-o}"); e("s_nop 0")
                e(f"buffer_load_dwordx4 v{6+mt}, {S(56)}, s15 offen offset:{o} sc1 lds")
    ACC=64
    def mm(ks,h):
        for (mt,nt) in ((0,0),(0,1),(1,1),(1,0)):
            acc=V(ACC+16*(2*mt+nt),16)
            e(f"v_mfma_f32_32x32x16_bf16 {acc}, {V(h+4*mt,4)}, {V(CR(ks,nt),4)}, {'0' if ks==0 else acc}")
    for ks in range(7):
        e(f"s_waitcnt vmcnt({30-2*ks})"); mm(ks,8+8*ks)
    e("s_lshr_b32 s10, s3, 1"); e("s_lshl_b32 s8, s5, 1"); e("s_add_u32 s10, s10, s8")
    e("s_and_b32 s8, s3, 1"); e("s_lshl_b32 s8, s8, 5"); e("s_lshl_b32 s9, s6, 6"); e("s_add_u32 s8, s8, s9"); e("v_add_u32 v240, s8, v3")
    e("s_lshl_b32 s8, s4, 2"); e("s_add_u32 s8, s8, s10")
    e(f"s_lshl_b32 s11, s8, 6"); e(f"s_add_u32 s11, s11, {WS_Y}"); e("v_lshlrev_b32 v241, 12, v240"); e("v_lshl_add_u32 v241, v2, 5, v241")
    e(f"s_lshl_b32 s12, s8, 7"); e(f"s_add_u32 s12, s12, {WS_G}"); e("v_lshlrev_b32 v242, 6, v2")
    e("v_lshlrev_b32 v243, 1, v240")
    e("s_lshl_b32 s8, s4, 7"); e("s_lshl_b32 s9, s10, 1"); e("s_sub_u32 s8, s8, s9"); e("s_add_u32 s8, s8, 6")
    e("v_lshl_add_u32 v244, v2, 6, s8"); e("v_xor_b32 v245, 64, v244")
    e("v_lshl_add_u32 v244, v244, 10, v243"); e("v_lshl_add_u32 v245, v245, 10, v243")
    e("v_lshlrev_b32 v246, 1, v244"); e("v_lshlrev_b32 v247, 1, v245")
    for j in range(8): e(f"s_mov_b32 s{16+j}, {8192*j}"); e(f"s_mov_b32 s{24+j}, {16384*j}")
    X=192; Y=208; G=216; DA=232; DB=233
    def par(j): return ((j>>1)^(j>>2))&1
    epi=[f"buffer_load_dwordx4 {V(Y,4)}, v241, {S(92)}, s11 offen sc1", f"buffer_load_dwordx4 {V(Y+4,4)}, v241, {S(92)}, s11 offen offset:16 sc1"]
    epi+=[f"buffer_load_dwordx4 {V(G+4*q,4)}, v242, {S(92)}, s12 offen offset:{16*q} sc1" for q in range(4)]
    epi+=[f"buffer_load_ushort v{DA}, v243, {S(72)}, 0 offen", f"buffer_load_ushort v{DB}, v243, {S(76)}, 0 offen"]
    for j in range(8):
        for r in range(2): epi.append(f"buffer_load_ushort v{X+2*j+r}, v{244+par(j)}, {S(68)}, s{16+j} offen offset:{1024*r}")
    e("s_lshr_b32 s14, s4, 3"); e("s_lshl_b32 s14, s14, 11"); e(f"s_add_u32 s14, s14, {WS_FY}"); e("v_lshlrev_b32 v234, 2, v240")
    e(f"buffer_load_dword v235, v234, {S(92)}, s14 offen sc1")
    for x in epi[2:]: e(x)
    ne=len(epi)-1
    def hrd(ks):
        e(f"s_waitcnt vmcnt({ne+2*(15-ks)})")
        for mt in range(2): e(f"ds_read_b128 {V(8+8*((ks-7)%7)+4*mt,4)}, v4 offset:{((ks-7)*2+mt)*1024}")
    hrd(7); hrd(8)
    for ks in range(7,16):
        if ks+2<16: hrd(ks+2); e("s_waitcnt lgkmcnt(4)")
        else: e(f"s_waitcnt lgkmcnt({2*(15-ks)})")
        mm(ks,8+8*((ks-7)%7))
    stamp(11)
    e(f"s_waitcnt vmcnt({ne-1})"); flag_check(235,234,92,"s14","GY"); e(epi[0]); e(epi[1])
    e("s_lshl_b32 s8, s3, 12"); e("v_lshl_add_u32 v17, v1, 4, s8")
    e("s_nop 7")
    for q in (0,1,3,2):
        for k in range(4): e(f"ds_write_b128 v4, {V(ACC+16*q+4*k,4)} offset:{q*4096+1024*k}")
    e("s_waitcnt lgkmcnt(0)"); e("s_barrier")
    for w in range(4):
        for k in range(4): e(f"ds_read_b128 {V(ACC+16*w+4*k,4)}, v17 offset:{w*18432+1024*k}")
    e("s_waitcnt vmcnt(0)")
    lab("GG_L"); e(f"v_xor_b32 v20, s{NON}, v{G+1}")
    for j in range(1,8): e(f"v_xor_b32 v21, s{NON}, v{G+2*j+1}"); e("v_or_b32 v20, v20, v21")
    e("v_cmp_ne_u32 vcc, 0, v20"); e("s_nop 4"); e("s_cbranch_vccz GG_OK")
    for x in epi[2:6]: e(x)
    e("s_waitcnt vmcnt(0)"); e("s_branch GG_L"); lab("GG_OK"); stamp(12)
    for j in range(8): e(f"v_and_b32 v{G+2*j+1}, 0xffff0000, v{G+2*j}"); e(f"v_lshlrev_b32 v{G+2*j}, 16, v{G+2*j}")
    e(f"v_lshlrev_b32 v{DA}, 16, v{DA}"); e(f"v_lshlrev_b32 v{DB}, 16, v{DB}")
    for j in range(8):
        x=X+2*j; g=G+2*j
        e(f"v_lshlrev_b32 v{x}, 16, v{x}"); e(f"v_lshlrev_b32 v{x+1}, 16, v{x+1}")
        e(f"v_pk_mul_f32 v[20:21], {V(x)}, {V(DA)} op_sel:[0,0] op_sel_hi:[1,0]"); e(f"v_pk_mul_f32 v[22:23], {V(x)}, {V(DA)} op_sel:[0,1] op_sel_hi:[1,1]")
        e("v_cvt_pk_bf16_f32 v20, v20, v21"); e("v_cvt_pk_bf16_f32 v22, v22, v23")
        e("v_and_b32 v21, 0xffff0000, v20"); e("v_lshlrev_b32 v20, 16, v20")
        e(f"v_and_b32 v{x+1}, 0xffff0000, v22"); e(f"v_lshlrev_b32 v{x}, 16, v22")
        e(f"v_lshlrev_b32 v22, 16, v{Y+j}"); e(f"v_and_b32 v23, 0xffff0000, v{Y+j}")
        e("v_pk_add_f32 v[20:21], v[20:21], v[22:23]"); e("v_cvt_pk_bf16_f32 v20, v20, v21")
        e("v_and_b32 v21, 0xffff0000, v20"); e("v_lshlrev_b32 v20, 16, v20")
        e(f"v_pk_mul_f32 v[20:21], v[20:21], {V(g)}"); e("v_cvt_pk_bf16_f32 v20, v20, v21")
        e(f"v_and_b32 v{33+2*j}, 0xffff0000, v20"); e(f"v_lshlrev_b32 v{32+2*j}, 16, v20")
        e(f"v_sub_f32 v{g}, 1.0, v{g}"); e(f"v_sub_f32 v{g+1}, 1.0, v{g+1}"); e(f"v_cvt_pk_bf16_f32 v{g}, v{g}, v{g+1}")
        e(f"v_and_b32 v{g+1}, 0xffff0000, v{g}"); e(f"v_lshlrev_b32 v{g}, 16, v{g}")
    e("s_waitcnt lgkmcnt(0)")
    for j in range(8):
        a=ACC+2*j
        e(f"v_pk_add_f32 {V(a)}, {V(a)}, {V(a+16)}"); e(f"v_pk_add_f32 {V(a+32)}, {V(a+32)}, {V(a+48)}")
        e(f"v_pk_add_f32 {V(a)}, {V(a)}, {V(a+32)}"); e(f"v_pk_add_f32 {V(a)}, {V(a)}, {V(X+2*j)}")
        e(f"v_pk_fma_f32 {V(a)}, {V(a)}, {V(G+2*j)}, {V(32+2*j)}")
        for r in range(2): e(f"buffer_store_dword v{a+r}, v{246+par(j)}, {S(80)}, s{24+j} offen offset:{2048*r}")
    stamp_end(13,8<<20)
    e("s_endpgm")
```

```python
import sys
from common import *
import k1gemm, k1conv, k2
N="gated_mix__ssm_conv_s4d__ssm_conv_s5__prompt"
hdr=[l for l in open(f"cdna_kernels/{N}.s.ref").read().split("\n") if l.startswith(";") and "@launch" not in l and "Override" not in l and "grid=ceil" not in l]
L.extend(hdr)
L.append("; @launch grid=(512,1,1) block=(256,1,1) lds=73728")
L.append('.amdgcn_target "amdgcn-amd-amdhsa--gfx950"'); L.append(".text")
def start(n):
    L.extend([f".globl {n}",".p2align 8",f".type {n},@function",f"{n}:"])
start(N+"_kernel")
e("s_cmp_ge_u32 s2, 512"); e("s_cbranch_scc0 K1_GO"); e("s_endpgm"); lab("K1_GO"); stamp(0)
load_ptrs(); e("s_memrealtime s[96:97]"); lane_bits()
e("s_cmp_ge_u32 s2, 256"); e("s_cbranch_scc1 K1_CONV")
k1gemm.gen(); k1conv.gen()
L.append('.section .rodata,"a"')
def desc(n,vg,acc):
    L.extend([".p2align 6",f".amdhsa_kernel {n}",f"  .amdhsa_next_free_vgpr {vg}","  .amdhsa_next_free_sgpr 102",f"  .amdhsa_accum_offset {acc}",
    "  .amdhsa_group_segment_fixed_size 0","  .amdhsa_kernarg_size 160","  .amdhsa_user_sgpr_count 2","  .amdhsa_user_sgpr_kernarg_segment_ptr 1","  .amdhsa_system_sgpr_workgroup_id_x 1",".end_amdhsa_kernel"])
desc(N+"_kernel",256,256)
open(sys.argv[1] if len(sys.argv)>1 else f"cdna_kernels/{N}.s","w").write("\n".join(L)+"\n")
```

```python
L=[]
def e(s): L.append("    "+s)
def lab(s): L.append(s+":")
def cm(s): L.append("    ; "+s)
WS_H=0; WS_C=4<<20; WS_Y=5<<20; WS_G=7<<20; WS_E=(7<<20)+65536
WS_FH=(7<<20)+0x40000; WS_FY=WS_FH+0x20000; WS_FC=WS_FH+0x40000; WS_XT=10<<20; WSSZ=0x1000000
NON=99
LOG2E="0x3fb8aa3b"; INV2PI="0x3e22f983"
def srd(d, base, nbytes, off=None):
    if off is None:
        e(f"s_mov_b32 s{d}, s{base}"); e(f"s_mov_b32 s{d+1}, s{base+1}")
    else:
        e(f"s_add_u32 s{d}, s{base}, {off}"); e(f"s_addc_u32 s{d+1}, s{base+1}, 0")
    e(f"s_mov_b32 s{d+2}, {nbytes}"); e(f"s_mov_b32 s{d+3}, 0x20000")
def S(d): return f"s[{d}:{d+3}]"
def V(a,n=2): return f"v[{a}:{a+n-1}]"
def A(a,n=4): return f"a[{a}:{a+n-1}]"
def cmul(d,a,b):
    e(f"v_pk_mul_f32 {V(d)}, {V(a)}, {V(b)} op_sel:[0,0] op_sel_hi:[0,1]")
    e(f"v_pk_fma_f32 {V(d)}, {V(a)}, {V(b)}, {V(d)} op_sel:[1,1,0] op_sel_hi:[1,0,1] neg_lo:[0,1,0]")
def cfma(d,a,b,c):
    e(f"v_pk_fma_f32 {V(d)}, {V(a)}, {V(b)}, {V(c)} op_sel:[0,0,0] op_sel_hi:[0,1,1]")
    e(f"v_pk_fma_f32 {V(d)}, {V(a)}, {V(b)}, {V(d)} op_sel:[1,1,0] op_sel_hi:[1,0,1] neg_lo:[0,1,0]")
def cexp(d,a2,brev,k,t):
    e(f"v_mul_f32 v{t}, {k}, v{a2}"); e(f"v_mul_f32 v{t+1}, {k}, v{brev}")
    e(f"v_exp_f32 v{t}, v{t}"); e(f"v_fract_f32 v{t+1}, v{t+1}")
    e(f"v_cos_f32 v{d}, v{t+1}"); e(f"v_sin_f32 v{d+1}, v{t+1}"); e("s_nop 0")
    e(f"v_mul_f32 v{d}, v{t}, v{d}"); e(f"v_mul_f32 v{d+1}, v{t}, v{d+1}")
def bfr(d,s):
    e(f"v_cvt_pk_bf16_f32 v{d}, v{s}, v{s}"); e(f"v_and_b32 v{d}, 0xffff0000, v{d}")
def expbf(d,s):
    e(f"v_mul_f32 v{d}, {LOG2E}, v{s}"); e(f"v_exp_f32 v{d}, v{d}"); e("s_nop 0"); bfr(d,d)
def fl(x):
    import struct
    return "0x%08x"%struct.unpack("<I",struct.pack("<f",x))[0]
def load_ptrs():
    e("s_load_dwordx16 s[16:31], s[0:1], 0"); e("s_load_dwordx16 s[32:47], s[0:1], 64"); e("s_load_dwordx8 s[48:55], s[0:1], 128")
def lane_bits():
    e("v_lshrrev_b32 v4, 6, v0"); e("v_and_b32 v1, 63, v0"); e("v_readfirstlane_b32 s3, v4")
    e("v_lshrrev_b32 v2, 5, v1"); e("v_and_b32 v3, 31, v1")
    e("v_bfe_u32 v4, v1, 1, 1"); e("v_bfe_u32 v5, v1, 3, 2"); e("v_lshl_or_b32 v4, v5, 1, v4")
    e("v_lshrrev_b32 v5, 2, v1"); e("v_lshrrev_b32 v6, 3, v1"); e("v_xor_b32 v5, v5, v6")
    e("v_lshrrev_b32 v6, 4, v1"); e("v_xor_b32 v5, v5, v6"); e("v_and_b32 v5, 1, v5")
import os
STAMP=os.environ.get("STAMP") in ("1","2")
STV=[255]
def stamp_mv(n):
    if STAMP: e(f"v_mov_b32 v{n}, v{STV[0]}")
    STV[0]=n
def stamp(i):
    if STAMP:
        e("s_memrealtime s[100:101]"); e("s_waitcnt lgkmcnt(0)"); e(f"v_writelane_b32 v{STV[0]}, s100, {i}")
def stamp_end(i,base):
    if STAMP:
        e("s_waitcnt vmcnt(0)"); stamp(i); e(f"v_mov_b32 v255, v{STV[0]}")
        if os.environ.get("STAMP")=="2":
            srd(92,52,64); e("v_readlane_b32 s100, v255, 0"); e("v_and_b32 v254, 63, v0"); e("v_subrev_u32 v255, s100, v255"); e("v_lshlrev_b32 v254, 2, v254")
            e("s_lshl_b32 s100, s2, 2"); e("s_add_u32 s100, s100, s3"); e(f"s_cmp_eq_u32 s100, {os.environ['SW']}"); e("s_cselect_b32 s100, 0, 0x100000"); e("s_mov_b64 exec, 0xfffe")
            e("buffer_store_dword v255, v254, s[92:95], s100 offen"); return
        srd(92,54,0x1000000)
        e("s_lshl_b32 s100, s2, 2"); e("s_add_u32 s100, s100, s3"); e("s_lshl_b32 s100, s100, 6"); e(f"s_add_u32 s100, s100, {base}")
        e("v_and_b32 v254, 63, v0"); e("v_lshlrev_b32 v254, 2, v254"); e("s_mov_b64 exec, 0xffff")
        e("buffer_store_dword v255, v254, s[92:95], s100 offen")

def nonce_issue(v,sr):
    e(f"v_mov_b32 v{v}, 0"); e(f"buffer_load_dword v{v}, v{v}, {S(sr)}, 0 offen sc1")
def nonce_check(v,sr,nm):
    lab(nm+"_NL"); e(f"v_readfirstlane_b32 s{NON}, v{v}"); e(f"s_cmp_lg_u32 s{NON}, 0"); e(f"s_cbranch_scc1 {nm}_NOK")
    e("s_sleep 2"); nonce_issue(v,sr); e("s_waitcnt vmcnt(0)"); e(f"s_branch {nm}_NL"); lab(nm+"_NOK")
def flag_check(v,va,sr,so,nm):
    lab(nm+"_FL"); e(f"v_cmp_ne_u32 vcc, s{NON}, v{v}"); e("s_nop 4"); e(f"s_cbranch_vccz {nm}_FOK")
    e(f"buffer_load_dword v{v}, v{va}, {S(sr)}, {so} offen sc1"); e("s_waitcnt vmcnt(0)"); e(f"s_branch {nm}_FL"); lab(nm+"_FOK")
def flag_store(vt,sr,so):
    e(f"v_mov_b32 v{vt}, s{NON}"); e(f"v_lshlrev_b32 v{vt+1}, 24, v1"); e(f"buffer_store_dword v{vt}, v{vt+1}, {S(sr)}, {so} offen sc1")
```

```python
from common import *
UB=19360; BS=2208; TB=8704
def gen():
    lab("K1_CONV"); STV[0]=255
    e("s_and_b32 s4, s2, 7"); e("s_lshl_b32 s4, s4, 5"); e("s_bfe_u32 s8, s2, 0x50003"); e("s_add_u32 s4, s4, s8")
    e("s_lshr_b32 s6, s3, 1"); e("s_and_b32 s7, s3, 1"); e("s_lshl_b32 s5, s4, 1"); e("s_add_u32 s5, s5, s6")
    e("s_lshl_b32 s8, s4, 9"); e("v_lshl_add_u32 v6, v0, 1, s8")
    e("s_lshl_b32 s8, s5, 1"); e("v_mov_b32 v7, s8")
    e("s_and_b32 s8, s4, 31"); e("s_lshl_b32 s8, s8, 16"); e("s_lshr_b32 s9, s4, 5"); e("s_lshl_b32 s9, s9, 7"); e("s_add_u32 s13, s8, s9")
    e("v_lshrrev_b32 v9, 5, v0"); e("v_lshlrev_b32 v8, 11, v3"); e("v_lshl_add_u32 v8, v9, 4, v8")
    e("s_waitcnt lgkmcnt(0)")
    srd(76,16,2097152); srd(88,52,256)
    e(f"buffer_load_dwordx4 v[200:203], v8, {S(76)}, s13 offen"); e(f"buffer_load_dwordx4 v[204:207], v8, {S(76)}, s13 offen offset:1024")
    if os.environ.get("EXP")=="1": stamp_end(10,8<<20); e("s_endpgm")
    srd(56,18,131072); srd(60,20,131072); srd(64,22,131072); srd(68,24,131072); srd(72,26,1024)
    for i in range(4): e(f"buffer_load_ushort v{20+i}, v6, {S(56+4*i)}, 0 offen")
    e(f"buffer_load_ushort v24, v7, {S(72)}, 0 offen")
    srd(80,40,524288); srd(84,42,524288); srd(72,48,1024); srd(92,54,WSSZ)
    e("s_lshr_b32 s8, s4, 4"); e("s_lshl_b32 s8, s8, 15"); e("s_and_b32 s9, s4, 15"); e("s_lshl_b32 s9, s9, 6"); e("s_add_u32 s8, s8, s9")
    e("s_lshl_b32 s9, s3, 4"); e("s_add_u32 s8, s8, s9")
    e("v_lshlrev_b32 v14, 10, v3"); e("v_lshl_add_u32 v14, v2, 3, v14")
    e(f"buffer_load_dwordx2 v[208:209], v14, {S(80)}, s8 offen"); e(f"buffer_load_dwordx2 v[210:211], v14, {S(84)}, s8 offen")
    e("s_lshl_b32 s8, s4, 13"); e("s_lshl_b32 s9, s3, 11"); e("s_add_u32 s8, s8, s9"); e("v_lshlrev_b32 v14, 4, v1")
    e(f"buffer_load_dwordx4 v[212:215], v14, {S(76)}, s8 offen"); e(f"buffer_load_dwordx4 v[216:219], v14, {S(76)}, s8 offen offset:1024")
    e(f"buffer_load_dwordx4 v[220:223], v14, {S(72)}, 0 offen")
    nonce_issue(25,88)
    e("s_andn2_b32 s8, s4, 31"); e("s_lshl_b32 s8, s8, 14"); e("s_and_b32 s9, s4, 31"); e("s_lshl_b32 s9, s9, 9"); e("s_add_u32 s13, s8, s9"); e(f"s_add_u32 s13, s13, {WS_XT}")
    e("v_lshlrev_b32 v8, 16, v9"); e("v_lshl_add_u32 v8, v3, 4, v8")
    e("s_mov_b32 s14, 0x05040100"); e("s_mov_b32 s15, 0x07060302")
    for c in range(4):
        e(f"v_add_u32 v14, {c}, v0"); e("v_lshrrev_b32 v15, 6, v14"); e("v_and_b32 v14, 63, v14")
        e(f"v_mul_u32_u24 v15, {BS}, v15"); e(f"v_lshl_add_u32 v{10+c}, v14, 2, v15")
    e("v_lshrrev_b32 v14, 2, v3"); e("v_and_b32 v15, 3, v3"); e("v_and_b32 v16, 3, v14")
    e("v_mul_u32_u24 v14, 272, v14"); e("v_lshl_add_u32 v14, v15, 2, v14"); e("v_cmp_lt_u32 vcc, v15, v16")
    for i in range(4): e(f"v_mov_b32 v{224+i}, 0")
    e("s_and_saveexec_b64 s[10:11], vcc"); e(f"ds_write_b32 v14, v224 offset:{UB+7*BS}"); e("s_mov_b64 exec, s[10:11]")
    e(f"s_mul_i32 s12, s3, {TB}"); e("v_lshl_add_u32 v16, v1, 2, s12")
    e("v_mul_u32_u24 v17, 272, v3"); e("v_lshl_add_u32 v17, v2, 4, v17"); e("v_add_u32 v17, s12, v17")
    stamp(1); e("s_waitcnt vmcnt(0)"); nonce_check(25,88,"C"); stamp(2)
    for k in range(4):
        t=228+4*k
        e(f"v_perm_b32 v{t}, v{204+k}, v{200+k}, s14"); e(f"v_mov_b32 v{t+1}, s{NON}"); e(f"v_perm_b32 v{t+2}, v{204+k}, v{200+k}, s15"); e(f"v_mov_b32 v{t+3}, s{NON}")
        e(f"buffer_store_dwordx4 {V(t,4)}, v8, {S(92)}, s13 offen sc1"); e("s_add_u32 s13, s13, 16384")
    e("v_perm_b32 v244, v210, v208, s14"); e("v_perm_b32 v245, v210, v208, s15"); e("v_perm_b32 v246, v211, v209, s14"); e("v_perm_b32 v247, v211, v209, s15")
    e("s_lshl_b32 s8, s4, 12"); e(f"s_add_u32 s8, s8, {WS_C}"); e("v_lshlrev_b32 v9, 4, v0")
    e(f"buffer_store_dwordx4 v[244:247], v9, {S(92)}, s8 offen sc1"); stamp(7)
    for r in range(20,25): e(f"v_lshlrev_b32 v{r}, 16, v{r}")
    expbf(24,24); expbf(20,20)
    e("v_mul_f32 v20, v20, v24"); e("v_mul_f32 v21, v21, v24")
    e(f"v_mul_f32 v20, {fl(-1.4426950408889634)}, v20"); e(f"v_mul_f32 v21, {INV2PI}, v21")
    e("v_add_f32 v24, v24, v24"); e("v_mul_f32 v22, v22, v24"); e("v_mul_f32 v23, v23, v24")
    Z8,Z16,Z1,Z2,Z4,Z256=26,28,30,32,34,36
    cexp(Z8,20,21,fl(8),18); cexp(Z16,20,21,fl(16),18)
    tmp=[60]
    def put(row,r,neg):
        t=tmp[0]; tmp[0]=60+(t-59)%4
        e(f"v_cvt_pk_bf16_f32 v{t}, v{r}, {'-' if neg else ''}v{r+1}"); e(f"ds_write_b32 v16, v{t} offset:{272*row}")
    e("v_mov_b32 v60, 0x3f80"); e("ds_write_b32 v16, v60"); tmp[0]=61
    put(1,Z8,0); put(2,Z16,0)
    ev,od=Z16,Z8
    for c in range(3,32):
        if c%2: n=40+((c>>1)%2)*2; cmul(n,od,Z16); od=n
        else:   n=44+((c>>1)%2)*2; cmul(n,ev,Z16); ev=n
        put(c,n,0)
    GF=128; RF=160
    for s in range(8): e(f"ds_read_b128 {V(GF+4*s,4)}, v17 offset:{32*s}")
    e("s_lshl_b32 s98, s4, 14"); e(f"s_add_u32 s98, s98, {WS_XT}"); e("v_add_u32 v8, 8192, v9")
    def xtl():
        for q in range(4): e(f"buffer_load_dwordx4 {V(228+4*q,4)}, v{9 if q<2 else 8}, {S(92)}, s98 offen offset:{(q&1)*4096-(q&1)*16 if 0 else 0} sc1") if not (q&1) else e(f"buffer_load_dwordx4 {V(228+4*q,4)}, v{9 if q<2 else 8}, {S(92)}, s97 offen sc1")
    e("s_add_u32 s97, s98, 4096")
    cexp(Z1,20,21,"1.0",18); cexp(Z2,20,21,"2.0",18); cexp(Z4,20,21,"4.0",18); cexp(Z256,20,21,fl(256),18)
    def row(h,reg): return (reg&3)+4*h+8*(reg>>2)
    for k in range(1,8): cmul(64+2*k, 22 if k==1 else 62+2*k, Z256)
    e("s_waitcnt lgkmcnt(0)")
    put(row(0,0),22,1); cmul(40,22,Z1); put(row(0,1),40,1)
    ev,od=22,40
    for j in range(2,8):
        if j%2: n=42 if od!=42 else 40; cmul(n,od,Z2); od=n
        else:   n=44 if ev!=44 else 46; cmul(n,ev,Z2); ev=n
        put(row(0,j),n,1)
    put(row(0,8),66,1); cmul(40,66,Z2); put(row(0,9),40,1); cmul(42,66,Z4); put(row(0,10),42,1)
    cmul(44,40,Z4); put(row(0,11),44,1); cmul(46,66,Z8); put(row(0,12),46,1)
    for (h,r0,b) in ((0,13,68),(1,0,70)):
        put(row(h,r0),b,1); cmul(40,b,Z4); put(row(h,r0+1),40,1); cmul(42,b,Z8); put(row(h,r0+2),42,1)
    for k in range(4):
        put(row(1,3+2*k),72+2*k,1); cmul(44+2*(k%2),72+2*k,Z8); put(row(1,4+2*k),44+2*(k%2),1)
    for s in range(8): e(f"ds_read_b128 {V(RF+4*s,4)}, v17 offset:{32*s}")
    D=64; stamp(3)
    for s in range(8):
        e(f"s_waitcnt lgkmcnt({7-s})")
        e(f"v_mfma_f32_32x32x16_bf16 {V(D,16)}, {V(RF+4*s,4)}, {V(GF+4*s,4)}, {'0' if s==0 else V(D,16)}")
    e("s_waitcnt vmcnt(0)")
    xtl()
    def uput(q):
        for c in range(4):
            e(f"ds_write_b32 v{10+c}, v{228+4*q} offset:{UB+(7+4*q)*BS+272*c}"); e(f"ds_write_b32 v{10+c}, v{230+4*q} offset:{UB+(7+4*q)*BS+272*(4+c)}")
    e("v_lshl_add_u32 v16, v1, 4, s12"); e("s_xor_b32 s13, s3, 1"); e(f"s_mul_i32 s13, s13, {TB}"); e("v_lshl_add_u32 v17, v1, 4, s13")
    e("s_nop 7")
    for k in range(4): e(f"ds_write_b128 v16, {V(D+4*k,4)} offset:{1024*k}")
    e("s_waitcnt lgkmcnt(0)"); e("s_barrier")
    for k in range(4): e(f"ds_read_b128 {V(80+4*k,4)}, v17 offset:{1024*k}")
    e("s_lshl_b32 s8, s4, 7"); e("s_lshl_b32 s9, s3, 24"); e("s_add_u32 s8, s8, s9"); e(f"s_add_u32 s8, s8, {WS_FC}"); flag_store(18,92,"s8")
    e("s_waitcnt lgkmcnt(0)"); e("s_barrier")
    for k in range(8): e(f"v_pk_add_f32 {V(D+2*k)}, {V(D+2*k)}, {V(80+2*k)}")
    e("v_lshlrev_b32 v16, 4, v0")
    for k in range(3): e(f"ds_write_b128 v16, v[224:227] offset:{UB+4096*k}")
    e("v_min_u32 v16, 3152, v16"); e(f"ds_write_b128 v16, v[224:227] offset:{UB+12288}")
    e("s_mul_i32 s12, s6, 8960"); e("s_mul_i32 s13, s7, 4480"); e("s_add_u32 s13, s13, s12")
    e("v_and_b32 v16, 15, v1"); e("v_lshl_add_u32 v16, v16, 4, s13"); e("ds_write_b128 v16, v[224:227] offset:4096")
    e("v_sub_u32 v16, 31, v3"); e("v_lshl_add_u32 v16, v16, 4, s13")
    e("v_and_b32 v17, 1, v1"); e("v_cmp_eq_u32 vcc, 1, v17"); e("s_nop 1")
    def chunk(kb,el,r):
        for q in range(4):
            hi=6+r-2*q
            e(f"v_cvt_pk_bf16_f32 v{80+q}, v{el[hi]}, v{el[hi-1]}")
        e(f"ds_write_b128 v16, v[80:83] offset:{512*(7-kb)}"); e("s_nop 0")
    def els(lst,prev):
        d={i:x for i,x in enumerate(lst)}; d[-1]=prev; return d
    def r2(b): return els([b,b,b,b+1,b+1,b+1,b+2,b+2],b)
    for k in range(4): e(f"v_cndmask_b32 v{84+k}, v{D+3+2*k}, v{D+4+2*k}, vcc")
    e("s_cmp_eq_u32 s7, 0"); e("s_cbranch_scc1 C_R0")
    for r in (1,0):
        if r==0: lab("C_R0")
        e("s_mov_b32 exec_hi, 0")
        chunk(0,els([D+i for i in range(8)],224),r)
        chunk(1,els([D+8,D+8,D+9,D+10,D+10,D+10,D+11,D+12],D+8),r)
        chunk(2,r2(D+13),r)
        if r==0:
            e(f"v_cvt_pk_bf16_f32 v80, v{D+7}, v{D+7}"); e(f"ds_write_b16 v16, v80 offset:{512*7-2}")
        e("s_mov_b32 exec_hi, -1"); e("s_mov_b32 exec_lo, 0")
        chunk(3,r2(D),r)
        for k in range(4):
            a=D+3+2*k; chunk(4+k,els([a,a,a,a,84+k,a+1,a+1,a+1],a),r)
        e("s_mov_b32 exec_lo, -1")
        if r==1: e("s_branch C_RD")
    lab("C_RD")
    stamp(4)
    for rr in range(2):
        for i in range(4):
            x=212+4*rr+i
            e(f"v_lshlrev_b32 v84, 16, v{x}"); e(f"v_and_b32 v85, 0xffff0000, v{x}")
            e(f"v_lshlrev_b32 v86, 16, v{220+i}"); e(f"v_and_b32 v87, 0xffff0000, v{220+i}")
            e("v_pk_mul_f32 v[84:85], v[84:85], v[86:87]"); e("v_cvt_pk_bf16_f32 v84, v84, v85")
            e("v_and_b32 v85, 0xffff0000, v84"); e("v_lshlrev_b32 v84, 16, v84")
            if i==0: e(f"v_add_f32 v{88+rr}, v84, v85")
            else: e(f"v_add_f32 v{88+rr}, v{88+rr}, v84"); e(f"v_add_f32 v{88+rr}, v{88+rr}, v85")
    for md in ("row_shr:1","row_shr:2","row_shr:4","row_shr:8","row_bcast:15 row_mask:0xa","row_bcast:31 row_mask:0xc"):
        e("s_nop 0")
        for rr in range(2): e(f"v_add_f32_dpp v{88+rr}, v{88+rr}, v{88+rr} {md}")
    for rr in range(2):
        bfr(88+rr,88+rr); e(f"v_mul_f32 v{88+rr}, {fl(-1.4426950408889634)}, v{88+rr}"); e(f"v_exp_f32 v{88+rr}, v{88+rr}"); e("s_nop 0")
        e(f"v_add_f32 v{88+rr}, 1.0, v{88+rr}"); e(f"v_rcp_f32 v{88+rr}, v{88+rr}"); e("s_nop 0")
    e("v_cvt_pk_bf16_f32 v88, v88, v89"); e(f"v_mov_b32 v89, s{NON}")
    e("s_lshr_b32 s8, s4, 3"); e("s_lshr_b32 s9, s4, 1"); e("s_xor_b32 s8, s8, s9"); e("s_lshr_b32 s9, s4, 2"); e("s_xor_b32 s8, s8, s9"); e("s_and_b32 s8, s8, 1"); e("s_lshl_b32 s8, s8, 6")
    e("s_and_b32 s9, s4, 7"); e("s_lshl_b32 s9, s9, 3"); e("s_add_u32 s8, s8, s9")
    e("s_lshr_b32 s9, s4, 4"); e("s_lshl_b32 s9, s9, 9"); e("s_add_u32 s8, s8, s9")
    e("s_sub_u32 s9, 3, s3"); e("s_lshl_b32 s9, s9, 7"); e("s_add_u32 s8, s8, s9"); e(f"s_add_u32 s8, s8, {WS_G}")
    e("v_cmp_eq_u32 vcc, 63, v1"); e("v_mov_b32 v18, 0x7ffffff0"); e("s_nop 0"); e("v_cndmask_b32 v18, v18, v224, vcc")
    e(f"buffer_store_dwordx2 v[88:89], v18, {S(92)}, s8 offen sc1")
    stamp(5); e("s_waitcnt vmcnt(2)")
    lab("C_XL")
    e(f"v_xor_b32 v18, s{NON}, v229")
    for r in range(231,244,2): e(f"v_xor_b32 v19, s{NON}, v{r}"); e("v_or_b32 v18, v18, v19")
    e("v_cmp_ne_u32 vcc, 0, v18"); e("s_nop 4"); e("s_cbranch_vccz C_XOK")
    e("s_sleep 8"); xtl(); e("s_waitcnt vmcnt(0)"); e("s_branch C_XL")
    lab("C_XOK"); stamp(6)
    for q in range(4): uput(q)
    e("v_lshl_or_b32 v18, v5, 3, v4"); e("v_sub_u32 v18, v2, v18"); e("v_add_u32 v18, 15, v18"); e("v_and_b32 v19, 1, v1"); e("v_mul_u32_u24 v19, 4480, v19")
    e("v_lshl_add_u32 v20, v18, 4, v19"); e("s_xor_b32 s9, s7, 1"); e("s_lshl_b32 s8, s9, 10"); e("s_add_u32 s8, s8, s12"); e("v_add_u32 v20, s8, v20")
    e("v_and_b32 v18, 3, v1"); e("v_bfe_u32 v19, v1, 3, 1"); e("v_lshl_or_b32 v22, v19, 2, v18")
    e("v_bfe_u32 v19, v1, 4, 1"); e("v_lshl_or_b32 v23, v5, 1, v19")
    e(f"v_mul_u32_u24 v18, {BS}, v22"); e("v_mul_u32_u24 v19, 272, v23"); e("v_add_u32 v18, v18, v19"); e("v_lshl_add_u32 v21, v2, 4, v18")
    e(f"s_mul_i32 s8, s9, {4*BS}"); e("s_mul_i32 s9, s6, 1088"); e("s_add_u32 s8, s8, s9"); e("v_add_u32 v21, s8, v21")
    e("s_waitcnt lgkmcnt(0)"); e("s_barrier")
    stamp(8); T0,T1,F=64,80,96; NB=3
    def rd(s):
        f=F+16*(s%NB)
        ob=UB+(3-(s>>3))*BS+224-32*(s&7)
        e(f"ds_read_b128 {V(f,4)}, v20 offset:{3040-32*s}"); e(f"ds_read_b128 {V(f+4,4)}, v21 offset:{ob}")
        e(f"ds_read_b128 {V(f+8,4)}, v21 offset:{ob+8*BS}"); e(f"ds_read_b128 {V(f+12,4)}, v20 offset:{992-32*s}")
    rd(0); rd(1)
    for s in range(32):
        f=F+16*(s%NB)
        if s+2<32: rd(s+2); e("s_waitcnt lgkmcnt(8)")
        else: e(f"s_waitcnt lgkmcnt({4 if s==30 else 0})")
        e(f"v_mfma_f32_32x32x16_bf16 {V(T0,16)}, {V(f,4)}, {V(f+4,4)}, {'0' if s==0 else V(T0,16)}")
        e(f"v_mfma_f32_32x32x16_bf16 {V(T1,16)}, {V(f,4)}, {V(f+8,4)}, {'0' if s==0 else V(T1,16)}")
        e(f"v_mfma_f32_32x32x16_bf16 {V(T1,16)}, {V(f+12,4)}, {V(f+4,4)}, {V(T1,16)}")
    stamp(9); e("s_barrier")
    e("s_lshl_b32 s8, s3, 12"); e("v_lshl_add_u32 v16, v1, 4, s8"); e("v_xor_b32 v17, 4096, v16")
    e("s_lshl_b32 s8, s5, 12"); e("s_lshl_b32 s9, s7, 11"); e("s_add_u32 s8, s8, s9"); e(f"s_add_u32 s8, s8, {WS_Y}")
    e("v_lshl_or_b32 v18, v22, 2, v23"); e("v_lshl_or_b32 v18, v18, 1, v2"); e("v_lshlrev_b32 v18, 4, v18")
    e("s_nop 3"); e("s_cmp_eq_u32 s7, 0"); e("s_cbranch_scc1 C_F0")
    for ww in (1,0):
        if ww==0: lab("C_F0")
        keep,send=(T1,T0) if ww else (T0,T1)
        for k in range(4): e(f"ds_write_b128 v16, {V(send+4*k,4)} offset:{1024*k}")
        e("s_waitcnt lgkmcnt(0)"); e("s_barrier")
        for k in range(4): e(f"ds_read_b128 {V(96+4*k,4)}, v17 offset:{1024*k}")
        e("s_waitcnt lgkmcnt(0)")
        for k in range(8):
            e(f"v_pk_add_f32 {V(96+2*k)}, {V(96+2*k)}, {V(keep+2*k)}"); e(f"v_cvt_pk_bf16_f32 v{112+k}, v{96+2*k}, v{97+2*k}")
        e(f"buffer_store_dwordx4 v[112:115], v18, {S(92)}, s8 offen sc1"); e(f"buffer_store_dwordx4 v[116:119], v18, {S(92)}, s8 offen offset:1024 sc1")
        e("s_lshl_b32 s8, s5, 7"); e(f"s_add_u32 s8, s8, {WS_FY+65536*ww}"); e("s_waitcnt vmcnt(0)"); flag_store(18,92,"s8")
        stamp_end(10,8<<20); e("s_endpgm")
```

```python
from common import *
def gen():
    lab("K1_GEMM"); stamp_mv(63); e("s_setprio 3")
    e("s_and_b32 s6, s2, 7"); e("s_bfe_u32 s7, s2, 0x50003")
    e("s_lshr_b32 s4, s6, 1"); e("s_lshl_b32 s4, s4, 2"); e("s_and_b32 s8, s7, 3"); e("s_add_u32 s4, s4, s8")
    e("s_and_b32 s5, s6, 1"); e("s_lshl_b32 s5, s5, 3"); e("s_lshr_b32 s8, s7, 2"); e("s_add_u32 s5, s5, s8")
    e("s_bfe_u32 s88, s7, 0x10002"); e("s_and_b32 s89, s6, 1"); e("s_lshl_b32 s89, s89, 2"); e("s_lshr_b32 s9, s7, 3"); e("s_add_u32 s89, s89, s9")
    e("s_and_b32 s90, s7, 3"); e("s_lshl_b32 s90, s90, 1"); e("s_add_u32 s90, s90, s8"); e("s_lshl_b32 s90, s90, 7")
    e("v_lshrrev_b32 v6, 3, v1"); e("v_and_b32 v7, 7, v1")
    e("v_bfe_u32 v8, v6, 1, 1")
    e("v_xor_b32 v7, v7, v8")
    e("v_and_b32 v9, 1, v6"); e("v_lshl_or_b32 v9, v9, 3, v8")
    e("v_lshrrev_b32 v10, 2, v6"); e("v_lshl_or_b32 v9, v10, 4, v9")
    e("s_lshl_b32 s8, s3, 5"); e("v_add_u32 v9, s8, v9")
    for q in range(4):
        e(f"v_xor_b32 v10, {2*q}, v7"); e(f"v_lshlrev_b32 v10, 4, v10")
        e(f"v_add_u32 v11, {2*q}, v9"); e(f"v_lshl_add_u32 v{12+q}, v11, 10, v10")
    e("s_and_b32 s8, s3, 1"); e("s_lshl_b32 s9, s8, 2"); e("s_lshl_b32 s8, s8, 4")
    for qq in range(2):
        e(f"v_xor_b32 v10, s9, v7"); e(f"v_xor_b32 v10, {2*qq}, v10"); e("v_lshlrev_b32 v10, 4, v10")
        e(f"v_add3_u32 v11, s8, v6, {8*qq}"); e(f"v_lshl_add_u32 v{16+qq}, v11, 10, v10")
    e("s_waitcnt lgkmcnt(0)")
    e("s_lshl_b32 s8, s4, 17"); srd(56,16,131072,"s8")
    e("s_cmp_lt_u32 s3, 2"); e("s_cselect_b32 s10, s36, s38"); e("s_cselect_b32 s11, s37, s39")
    e("s_lshl_b32 s8, s5, 15"); srd(60,10,32768,"s8")
    srd(64,32,1024); srd(68,34,1024); srd(72,44,1024)
    e("s_lshl_b32 s8, s5, 13"); e(f"s_add_u32 s8, s8, {WS_E}"); srd(76,54,8192,"s8")
    srd(80,52,256)
    e("s_or_b32 s8, s2, s3"); e("s_cmp_lg_u32 s8, 0"); e("s_cbranch_scc1 G_NW")
    e(f"s_or_b32 s{NON}, s96, 1"); flag_store(10,80,"0")
    lab("G_NW")
    e("s_lshl_b32 s8, s4, 18"); srd(84,54,262144,"s8")
    e("s_lshl_b32 s8, s5, 6"); e("v_lshl_add_u32 v10, v3, 1, s8")
    e(f"buffer_load_ushort v20, v10, {S(64)}, 0 offen"); e(f"buffer_load_ushort v21, v10, {S(68)}, 0 offen"); e(f"buffer_load_ushort v22, v10, {S(72)}, 0 offen")
    e("s_lshl_b32 s8, s4, 9"); e("v_lshl_add_u32 v18, v3, 4, s8"); e("v_mov_b32 v10, 0x7ffffff0")
    e("v_cmp_lt_u32 vcc, 223, v0"); e("v_mov_b32 v24, 0"); e("v_mov_b32 v25, 0"); e("v_cndmask_b32 v18, v10, v18, vcc")
    e("v_mov_b32 v26, 0"); e("v_mov_b32 v27, 0")
    srd(92,54,WSSZ)
    e("s_lshl_b32 s13, s3, 12"); e("s_lshl_b32 s14, s3, 11"); e("s_add_u32 s14, s14, 16384")
    def dma(st):
        b=(st%3)*24576
        e(f"s_add_u32 s15, s90, {128*st}"); e("s_and_b32 s15, s15, 1023")
        for q in range(4):
            e(f"s_add_u32 m0, s13, {b+1024*q}"); e("s_nop 0"); e(f"buffer_load_dwordx4 v{12+q}, {S(56)}, s15 offen lds")
        for q in range(2):
            e(f"s_add_u32 m0, s14, {b+1024*q}"); e("s_nop 0"); e(f"buffer_load_dwordx4 v{16+q}, {S(60)}, s15 offen lds")
    for st in range(3): dma(st)
    for s in range(4):
        e(f"v_or_b32 v10, {2*s}, v2"); e("v_xor_b32 v10, v10, v4"); e("v_lshlrev_b32 v10, 4, v10")
        e(f"v_lshl_add_u32 v{28+s}, v3, 7, v10"); e(f"v_add_u32 v{32+s}, s13, v{28+s}"); e(f"v_add_u32 v{28+s}, 16384, v{28+s}")
    stamp(1); e("s_waitcnt vmcnt(18)"); stamp(2)
    for r in (20,21,22): e(f"v_lshlrev_b32 v{r}, 16, v{r}")
    expbf(22,22)
    e("v_mul_f32 v36, v22, v20"); e("v_mul_f32 v37, v22, v21")
    e(f"v_mul_f32 v36, {LOG2E}, v36"); e(f"v_mul_f32 v37, {INV2PI}, v37")
    cexp(40,36,37,"1.0",38); cexp(42,36,37,fl(8),38);
    e("s_lshl_b32 s8, s3, 2"); e("s_sub_u32 s8, 15, s8"); e("v_sub_u32 v10, s8, v2"); e("v_lshlrev_b32 v10, 7, v10"); e("v_cvt_f32_u32 v10, v10")
    cexp(44,36,37,"v10",38); e(f"v_add_f32 v10, {fl(-256)}, v10"); cexp(46,36,37,"v10",38)
    e("v_lshrrev_b32 v10, 5, v0"); e("v_lshlrev_b32 v10, 4, v10"); e("v_cvt_f32_u32 v10, v10")
    cexp(48,36,37,"v10",38)
    e("v_mul_f32 v38, v20, v20"); e("v_fmac_f32 v38, v21, v21"); e("v_rcp_f32 v38, v38")
    e("v_add_f32 v52, -1.0, v40"); e("v_mov_b32 v53, v41"); e("v_add_f32 v38, v38, v38")
    e("v_mul_f32 v54, v20, v38"); e("v_mul_f32 v55, v21, v38"); e("v_sub_f32 v55, 0, v55")
    cmul(50,52,54)
    RE=64; IM=80; FR=96
    e("v_bfe_u32 v19, v1, 2, 1"); e("v_and_b32 v10, 3, v1"); e("v_lshlrev_b32 v10, 7, v10"); e("v_lshl_add_u32 v19, v19, 11, v10")
    e("s_lshl_b32 s91, s89, 12"); e("s_lshl_b32 s8, s3, 9"); e("s_add_u32 s91, s91, s8"); e(f"s_add_u32 s91, s91, {WS_FC}")
    e("s_lshl_b32 s8, s89, 17"); e(f"s_add_u32 s8, s8, {WS_C}"); srd(64,54,131072,"s8")
    e("s_lshl_b32 s8, s3, 14"); e("v_lshl_add_u32 v6, v1, 4, s8"); e("v_add_u32 v7, 0x10000, v6")
    def CR(ks,nt): return (192 if ks<8 else 128-64)+8*ks+4*nt
    def cld(k0):
        for ks in range(k0,k0+8):
            if ks%4==0: e(f"s_mov_b32 s15, {1024*ks}")
            for nt in range(2): e(f"buffer_load_dwordx4 {V(CR(ks,nt),4)}, v{6+nt}, {S(64)}, s15 offen offset:{1024*(ks%4)} sc1")
    def rds(k,s):
        b=(k%3)*24576; f=FR+48*(k%2)+12*s
        return [f"ds_read_b128 {V(f,4)}, v{32+s} offset:{b}", f"ds_read_b128 {V(f+4,4)}, v{28+s} offset:{b}", f"ds_read_b128 {V(f+8,4)}, v{28+s} offset:{b+4096}"]
    e("s_waitcnt vmcnt(12)"); e("s_barrier"); stamp(3)
    for s in range(4):
        for x in rds(0,s): e(x)
    waits=[6,6,6,6,6,7,1,None]
    for k in range(8):
        if k<7: e(f"s_waitcnt vmcnt({waits[k]}) lgkmcnt(0)"); e("s_barrier")
        else: e("s_waitcnt lgkmcnt(0)")
        if k in (2,6): stamp({2:4,6:5}[k])
        fill=[]
        if k<7:
            for s in range(4): fill.append(rds(k+1,s))
        n0=len(L)
        if k+3<8: dma(k+3)
        dl=L[n0:]; del L[n0:]
        dg=[dl[:5]]+[dl[5+3*i:8+3*i] for i in range(5)] if dl else []
        i=0
        for s in range(4):
            for (acc,o) in ((RE,4),(IM,8)):
                f=FR+48*(k%2)+12*s
                c="0" if (k==0 and s==0) else V(acc,16)
                e(f"v_mfma_f32_32x32x16_bf16 {V(acc,16)}, {V(f,4)}, {V(f+o,4)}, {c}")
                if i<len(dg): L.extend(dg[i])
                if i>=1 and i-1<len(fill):
                    for x in fill[i-1]: e(x)
                i+=1
        if k==4: nonce_issue(22,80)
    if os.environ.get("EXP") in ("1","2"): stamp_end(6,8<<20); e("s_endpgm")
    EB=49152
    e("s_nop 1"); e("v_lshlrev_b32 v56, 4, v0"); e(f"ds_write_b128 v56, v[24:27] offset:{EB}")
    e("v_lshrrev_b32 v56, 5, v0"); e("v_lshlrev_b32 v56, 9, v56"); e("v_lshl_add_u32 v56, v3, 3, v56")
    e("s_nop 7")
    def step(dr,di,pr,pi,t):
        e(f"v_pk_fma_f32 {V(dr)}, {V(40)}, {V(pr)}, {V(RE+2*t)} op_sel:[0,0,0] op_sel_hi:[0,1,1]")
        e(f"v_pk_fma_f32 {V(di)}, {V(40)}, {V(pi)}, {V(IM+2*t)} op_sel:[0,0,0] op_sel_hi:[0,1,1]")
        e(f"v_pk_fma_f32 {V(dr)}, {V(40)}, {V(pi)}, {V(dr)} op_sel:[1,0,0] op_sel_hi:[1,1,1] neg_lo:[1,0,0] neg_hi:[1,0,0]")
        e(f"v_pk_fma_f32 {V(di)}, {V(40)}, {V(pr)}, {V(di)} op_sel:[1,0,0] op_sel_hi:[1,1,1]")
    pr,pi=RE,IM
    for t in range(1,8):
        dr,di=(96,98) if t%2 else (100,102)
        step(dr,di,pr,pi,t); pr,pi=dr,di
    e("v_mov_b32 v58, v96"); e("v_mov_b32 v59, v98"); e("v_mov_b32 v60, v97"); e("v_mov_b32 v61, v99")
    e(f"ds_write_b64 v56, v[58:59] offset:{EB+4096}"); e(f"ds_write_b64 v56, v[60:61] offset:{EB+4096+256}")
    e("s_waitcnt lgkmcnt(0)"); e("s_barrier")
    for j in range(14): e(f"ds_read_b64 {V(96+2*j)}, v56 offset:{EB+512+256*j}")
    for j in range(1,14):
        e(f"s_waitcnt lgkmcnt({13-j})"); cfma(96+2*j,42,96+2*j-2,96+2*j)
    cfma(58,42,122,58); cfma(60,42,58,60)
    e("s_waitcnt vmcnt(0)"); nonce_check(22,80,"G")
    e("v_mov_b32 v24, v60"); e(f"v_mov_b32 v25, s{NON}"); e("v_mov_b32 v26, v61"); e(f"v_mov_b32 v27, s{NON}")
    e(f"buffer_store_dwordx4 v[24:27], v18, {S(76)}, 0 offen sc1")
    stamp(6)
    e("s_lshl_b32 s8, s4, 9"); e("s_lshl_b32 s9, s3, 11"); e("s_add_u32 s8, s8, s9"); e("s_sub_u32 s8, s8, 8192"); e("v_lshl_add_u32 v12, v1, 4, s8"); e("v_add_u32 v13, 1024, v12")
    G=128
    def gl():
        for j in range(2): e(f"buffer_load_dwordx4 {V(G+4*j,4)}, v{12+j}, {S(76)}, 0 offen sc1")
    for t in range(8):
        e(f"v_pk_mul_f32 {V(96)}, {V(50)}, {V(IM+2*t)} op_sel:[1,0] op_sel_hi:[1,1]")
        e(f"v_pk_mul_f32 {V(IM+2*t)}, {V(50)}, {V(IM+2*t)} op_sel:[0,0] op_sel_hi:[0,1]")
        e(f"v_pk_fma_f32 {V(IM+2*t)}, {V(50)}, {V(RE+2*t)}, {V(IM+2*t)} op_sel:[1,0,0] op_sel_hi:[1,1,1]")
        e(f"v_pk_fma_f32 {V(RE+2*t)}, {V(50)}, {V(RE+2*t)}, {V(96)} op_sel:[0,0,0] op_sel_hi:[0,1,1] neg_lo:[0,0,1] neg_hi:[0,0,1]")
    e("v_lshlrev_b32 v14, 3, v0"); e("v_lshlrev_b32 v15, 3, v3")
    gl(); e(f"buffer_load_dword v23, v19, {S(92)}, s91 offen sc1")
    lab("G_POLL")
    e("s_waitcnt vmcnt(0)")
    e("v_mov_b32 v10, 0")
    for j in range(2):
        e(f"v_ashrrev_i32 v11, 31, v{12+j}"); e(f"v_xor_b32 v{G+4*j+1}, s{NON}, v{G+4*j+1}"); e(f"v_xor_b32 v{G+4*j+3}, s{NON}, v{G+4*j+3}")
        e(f"v_or_b32 v{G+4*j+1}, v{G+4*j+1}, v{G+4*j+3}"); e(f"v_bfi_b32 v11, v11, 0, v{G+4*j+1}"); e("v_or_b32 v10, v10, v11")
    e("v_cmp_ne_u32 vcc, 0, v10"); e("s_nop 4"); e("s_cbranch_vccz G_POLL_OK")
    gl(); e("s_branch G_POLL")
    lab("G_POLL_OK"); stamp(8)
    for j in range(2): e(f"v_mov_b32 v{G+4*j+1}, v{G+4*j+2}")
    cmul(96,44,G); cfma(96,46,G+4,96)
    e(f"ds_write_b64 v14, v[96:97] offset:{EB+8192}"); e("s_waitcnt lgkmcnt(0)"); e("s_barrier"); stamp(7)
    for j in range(8): e(f"ds_read_b64 {V(G+2*j)}, v15 offset:{EB+8192+256*j}")
    flag_check(23,19,92,"s91","GC"); cld(0)
    e("s_waitcnt lgkmcnt(0)")
    for st in (8,4,2):
        for j in range(0,st,2): e(f"v_pk_add_f32 {V(G+j)}, {V(G+j)}, {V(G+j+st)}")
    HX=G
    cmul(98,48,HX)
    e(f"v_pk_add_f32 {V(122)}, {V(122)}, {V(98)}")
    cfma(58,42,98,58)
    cmul(100,50,122); cmul(102,50,58)
    e("v_mov_b32 v96, v100"); e("v_mov_b32 v97, v102"); e("v_mov_b32 v98, v101"); e("v_mov_b32 v99, v103")
    e("v_lshrrev_b32 v56, 5, v0"); e("v_mul_u32_u24 v56, 2304, v56"); e("v_lshl_add_u32 v56, v3, 2, v56")
    pr,pi=96,98
    for t in range(8):
        dr,di=(104,106) if t%2==0 else (108,110)
        step(dr,di,pr,pi,t); pr,pi=dr,di
        e(f"v_cvt_pk_bf16_f32 v{112+2*(t%2)}, v{dr}, -v{di}"); e(f"v_cvt_pk_bf16_f32 v{113+2*(t%2)}, v{dr+1}, -v{di+1}")
        e(f"ds_write_b32 v56, v{112+2*(t%2)} offset:{144*t}"); e(f"ds_write_b32 v56, v{113+2*(t%2)} offset:{144*(t+8)}")
    e("v_lshl_or_b32 v10, v5, 3, v4"); e("v_and_b32 v11, 1, v1"); e("v_lshl_add_u32 v10, v10, 3, v11")
    e("s_lshl_b32 s8, s3, 1"); e("s_sub_u32 s8, 6, s8"); e("v_add_u32 v10, s8, v10")
    e("v_mul_u32_u24 v10, 144, v10"); e("v_lshl_add_u32 v10, v2, 4, v10")
    e("s_lshl_b32 s8, s3, 16"); e("s_lshl_b32 s9, s5, 12"); e("s_add_u32 s8, s8, s9"); e("v_lshlrev_b32 v11, 4, v1")
    e("s_waitcnt lgkmcnt(0)"); e("s_barrier")
    for k in range(4): e(f"ds_read_b128 {V(96+4*k,4)}, v10 offset:{32*k}")
    for k in range(4):
        e(f"s_waitcnt lgkmcnt({3-k})"); e(f"buffer_store_dwordx4 {V(96+4*k,4)}, v11, {S(84)}, s8 offen offset:{1024*k} sc1")
    e("s_lshl_b32 s8, s4, 13"); e(f"s_add_u32 s8, s8, {WS_FH}"); e("s_lshl_b32 s9, s3, 11"); e("s_add_u32 s9, s9, s8"); e("s_lshl_b32 s10, s5, 7"); e("s_add_u32 s9, s9, s10")
    e("s_lshl_b32 s10, s88, 12"); e("s_add_u32 s91, s8, s10"); e("s_lshl_b32 s10, s3, 9"); e("s_add_u32 s91, s91, s10")
    e("v_mov_b32 v9, v19")
    e("s_barrier"); stamp(9)
    e("s_waitcnt vmcnt(0)"); stamp(14); flag_store(10,92,"s9"); cld(8)
    e(f"buffer_load_dword v8, v9, {S(92)}, s91 offen sc1")
    import k2; k2.gen(CR)
```

```python
from common import *
def gen(CR):
    stamp_mv(5)
    e("s_mov_b32 s5, s88"); e("s_mov_b32 s6, s89")
    e("s_lshl_b32 s8, s4, 18"); e("s_lshl_b32 s9, s5, 17"); e("s_add_u32 s8, s8, s9"); srd(56,54,131072,"s8")
    srd(68,16,2097152); srd(72,28,1024); srd(76,46,1024); srd(80,50,4194304)
    e("s_mul_i32 s13, s3, 18432"); e("v_lshl_add_u32 v4, v1, 4, s13")
    e("s_waitcnt vmcnt(0)"); flag_check(8,9,92,"s91","GH"); stamp(10)
    for ks in range(16):
        if ks%4==0 or ks>=7: e(f"s_mov_b32 s15, {1024*ks}")
        o=1024*(ks%4) if ks<7 else 0
        for mt in range(2):
            if ks<7: e(f"buffer_load_dwordx4 {V(8+8*ks+4*mt,4)}, v{6+mt}, {S(56)}, s15 offen offset:{o} sc1")
            else:
                e(f"s_add_u32 m0, s13, {((ks-7)*2+mt)*1024-o}"); e("s_nop 0")
                e(f"buffer_load_dwordx4 v{6+mt}, {S(56)}, s15 offen offset:{o} sc1 lds")
    ACC=64
    def mm(ks,h):
        for (mt,nt) in ((0,0),(0,1),(1,1),(1,0)):
            acc=V(ACC+16*(2*mt+nt),16)
            e(f"v_mfma_f32_32x32x16_bf16 {acc}, {V(h+4*mt,4)}, {V(CR(ks,nt),4)}, {'0' if ks==0 else acc}")
    for ks in range(7):
        e(f"s_waitcnt vmcnt({30-2*ks})"); mm(ks,8+8*ks)
    e("s_lshr_b32 s10, s3, 1"); e("s_lshl_b32 s8, s5, 1"); e("s_add_u32 s10, s10, s8")
    e("s_and_b32 s8, s3, 1"); e("s_lshl_b32 s8, s8, 5"); e("s_lshl_b32 s9, s6, 6"); e("s_add_u32 s8, s8, s9"); e("v_add_u32 v240, s8, v3")
    e("s_lshl_b32 s8, s4, 2"); e("s_add_u32 s8, s8, s10")
    e("s_and_b32 s11, s8, 32"); e("s_add_u32 s11, s11, s8"); e(f"s_lshl_b32 s11, s11, 5"); e(f"s_add_u32 s11, s11, {WS_Y}"); e("v_lshlrev_b32 v241, 12, v240"); e("v_lshl_add_u32 v241, v2, 4, v241")
    e(f"s_lshl_b32 s12, s8, 7"); e(f"s_add_u32 s12, s12, {WS_G}"); e("v_lshlrev_b32 v242, 6, v2")
    e("v_lshlrev_b32 v243, 1, v240")
    e("s_lshl_b32 s8, s4, 7"); e("s_lshl_b32 s9, s10, 1"); e("s_sub_u32 s8, s8, s9"); e("s_add_u32 s8, s8, 6")
    e("v_lshl_add_u32 v244, v2, 6, s8"); e("v_xor_b32 v245, 64, v244")
    e("v_lshl_add_u32 v244, v244, 10, v243"); e("v_lshl_add_u32 v245, v245, 10, v243")
    e("v_lshlrev_b32 v246, 1, v244"); e("v_lshlrev_b32 v247, 1, v245")
    for j in range(8): e(f"s_mov_b32 s{16+j}, {8192*j}"); e(f"s_mov_b32 s{24+j}, {16384*j}")
    X=192; Y=208; G=216; DA=232; DB=233
    def par(j): return ((j>>1)^(j>>2))&1
    epi=[f"buffer_load_dwordx4 {V(Y,4)}, v241, {S(92)}, s11 offen sc1", f"buffer_load_dwordx4 {V(Y+4,4)}, v241, {S(92)}, s11 offen offset:1024 sc1"]
    epi+=[f"buffer_load_dwordx4 {V(G+4*q,4)}, v242, {S(92)}, s12 offen offset:{16*q} sc1" for q in range(4)]
    epi+=[f"buffer_load_ushort v{DA}, v243, {S(72)}, 0 offen", f"buffer_load_ushort v{DB}, v243, {S(76)}, 0 offen"]
    for j in range(8):
        for r in range(2): epi.append(f"buffer_load_ushort v{X+2*j+r}, v{244+par(j)}, {S(68)}, s{16+j} offen offset:{1024*r}")
    e("s_lshr_b32 s14, s4, 3"); e("s_lshl_b32 s14, s14, 16"); e(f"s_add_u32 s14, s14, {WS_FY}"); e("v_lshlrev_b32 v234, 7, v240")
    e(f"buffer_load_dword v235, v234, {S(92)}, s14 offen sc1")
    for x in epi[2:]: e(x)
    ne=len(epi)-1
    def hrd(ks):
        e(f"s_waitcnt vmcnt({ne+2*(15-ks)})")
        for mt in range(2): e(f"ds_read_b128 {V(8+8*((ks-7)%7)+4*mt,4)}, v4 offset:{((ks-7)*2+mt)*1024}")
    hrd(7); hrd(8)
    for ks in range(7,16):
        if ks+2<16: hrd(ks+2); e("s_waitcnt lgkmcnt(4)")
        else: e(f"s_waitcnt lgkmcnt({2*(15-ks)})")
        mm(ks,8+8*((ks-7)%7))
    stamp(11)
    e(f"s_waitcnt vmcnt({ne-1})"); flag_check(235,234,92,"s14","GY"); e(epi[0]); e(epi[1]); stamp(15)
    e("s_lshl_b32 s8, s3, 12"); e("v_lshl_add_u32 v17, v1, 4, s8")
    e("s_nop 7")
    for q in (0,1,3,2):
        for k in range(4): e(f"ds_write_b128 v4, {V(ACC+16*q+4*k,4)} offset:{q*4096+1024*k}")
    e("s_waitcnt lgkmcnt(0)"); e("s_barrier")
    for w in range(4):
        for k in range(4): e(f"ds_read_b128 {V(ACC+16*w+4*k,4)}, v17 offset:{w*18432+1024*k}")
    e("s_waitcnt vmcnt(0)")
    lab("GG_L"); e(f"v_xor_b32 v20, s{NON}, v{G+1}")
    for j in range(1,8): e(f"v_xor_b32 v21, s{NON}, v{G+2*j+1}"); e("v_or_b32 v20, v20, v21")
    e("v_cmp_ne_u32 vcc, 0, v20"); e("s_nop 4"); e("s_cbranch_vccz GG_OK")
    for x in epi[2:6]: e(x)
    e("s_waitcnt vmcnt(0)"); e("s_branch GG_L"); lab("GG_OK"); stamp(12)
    for j in range(8): e(f"v_and_b32 v{G+2*j+1}, 0xffff0000, v{G+2*j}"); e(f"v_lshlrev_b32 v{G+2*j}, 16, v{G+2*j}")
    e(f"v_lshlrev_b32 v{DA}, 16, v{DA}"); e(f"v_lshlrev_b32 v{DB}, 16, v{DB}")
    for j in range(8):
        x=X+2*j; g=G+2*j
        e(f"v_lshlrev_b32 v{x}, 16, v{x}"); e(f"v_lshlrev_b32 v{x+1}, 16, v{x+1}")
        e(f"v_pk_mul_f32 v[20:21], {V(x)}, {V(DA)} op_sel:[0,0] op_sel_hi:[1,0]"); e(f"v_pk_mul_f32 v[22:23], {V(x)}, {V(DA)} op_sel:[0,1] op_sel_hi:[1,1]")
        e("v_cvt_pk_bf16_f32 v20, v20, v21"); e("v_cvt_pk_bf16_f32 v22, v22, v23")
        e("v_and_b32 v21, 0xffff0000, v20"); e("v_lshlrev_b32 v20, 16, v20")
        e(f"v_and_b32 v{x+1}, 0xffff0000, v22"); e(f"v_lshlrev_b32 v{x}, 16, v22")
        e(f"v_lshlrev_b32 v22, 16, v{Y+j}"); e(f"v_and_b32 v23, 0xffff0000, v{Y+j}")
        e("v_pk_add_f32 v[20:21], v[20:21], v[22:23]"); e("v_cvt_pk_bf16_f32 v20, v20, v21")
        e("v_and_b32 v21, 0xffff0000, v20"); e("v_lshlrev_b32 v20, 16, v20")
        e(f"v_pk_mul_f32 v[20:21], v[20:21], {V(g)}"); e("v_cvt_pk_bf16_f32 v20, v20, v21")
        e(f"v_and_b32 v{33+2*j}, 0xffff0000, v20"); e(f"v_lshlrev_b32 v{32+2*j}, 16, v20")
        e(f"v_sub_f32 v{g}, 1.0, v{g}"); e(f"v_sub_f32 v{g+1}, 1.0, v{g+1}"); e(f"v_cvt_pk_bf16_f32 v{g}, v{g}, v{g+1}")
        e(f"v_and_b32 v{g+1}, 0xffff0000, v{g}"); e(f"v_lshlrev_b32 v{g}, 16, v{g}")
    e("s_waitcnt lgkmcnt(0)")
    for j in range(8):
        a=ACC+2*j
        e(f"v_pk_add_f32 {V(a)}, {V(a)}, {V(a+16)}"); e(f"v_pk_add_f32 {V(a+32)}, {V(a+32)}, {V(a+48)}")
        e(f"v_pk_add_f32 {V(a)}, {V(a)}, {V(a+32)}"); e(f"v_pk_add_f32 {V(a)}, {V(a)}, {V(X+2*j)}")
        e(f"v_pk_fma_f32 {V(a)}, {V(a)}, {V(G+2*j)}, {V(32+2*j)}")
        for r in range(2): e(f"buffer_store_dword v{a+r}, v{246+par(j)}, {S(80)}, s{24+j} offen offset:{2048*r}")
    stamp_end(13,8<<20)
    e("s_endpgm")
```

```python
from common import *
UB=19360; BS=2208; TB=8704
def gen():
    lab("K1_CONV"); STV[0]=255
    e("s_and_b32 s4, s2, 7"); e("s_lshl_b32 s4, s4, 5"); e("s_bfe_u32 s8, s2, 0x50003"); e("s_add_u32 s4, s4, s8")
    e("s_lshr_b32 s6, s3, 1"); e("s_and_b32 s7, s3, 1"); e("s_lshl_b32 s5, s4, 1"); e("s_add_u32 s5, s5, s6")
    e("s_lshl_b32 s8, s4, 9"); e("v_lshl_add_u32 v6, v0, 1, s8")
    e("s_lshl_b32 s8, s5, 1"); e("v_mov_b32 v7, s8")
    e("s_and_b32 s8, s4, 31"); e("s_lshl_b32 s8, s8, 16"); e("s_lshr_b32 s9, s4, 5"); e("s_lshl_b32 s9, s9, 7"); e("s_add_u32 s13, s8, s9")
    e("v_lshrrev_b32 v9, 5, v0"); e("v_lshlrev_b32 v8, 11, v3"); e("v_lshl_add_u32 v8, v9, 4, v8")
    e("s_waitcnt lgkmcnt(0)")
    srd(76,16,2097152); srd(88,52,256)
    e("s_or_b32 s8, s2, s3"); e("s_cmp_lg_u32 s8, 0"); e("s_cbranch_scc1 G_NW")
    e(f"s_or_b32 s{NON}, s96, 1"); flag_store(14,88,"0")
    lab("G_NW")
    if os.environ.get("EXP")=="1": stamp_end(10,8<<20); e("s_endpgm")
    srd(56,18,131072); srd(60,20,131072); srd(64,22,131072); srd(68,24,131072); srd(72,26,1024)
    for i in range(4): e(f"buffer_load_ushort v{20+i}, v6, {S(56+4*i)}, 0 offen")
    e(f"buffer_load_ushort v24, v7, {S(72)}, 0 offen")
    e(f"buffer_load_dwordx4 v[200:203], v8, {S(76)}, s13 offen"); e(f"buffer_load_dwordx4 v[204:207], v8, {S(76)}, s13 offen offset:1024")
    srd(80,40,524288); srd(84,42,524288); srd(72,48,1024); srd(92,54,WSSZ)
    e("s_lshr_b32 s8, s4, 4"); e("s_lshl_b32 s8, s8, 15"); e("s_and_b32 s9, s4, 15"); e("s_lshl_b32 s9, s9, 6"); e("s_add_u32 s8, s8, s9")
    e("s_lshl_b32 s9, s3, 4"); e("s_add_u32 s8, s8, s9")
    e("v_lshlrev_b32 v14, 10, v3"); e("v_lshl_add_u32 v14, v2, 3, v14")
    e(f"buffer_load_dwordx2 v[208:209], v14, {S(80)}, s8 offen"); e(f"buffer_load_dwordx2 v[210:211], v14, {S(84)}, s8 offen")
    e("s_lshl_b32 s8, s4, 13"); e("s_lshl_b32 s9, s3, 11"); e("s_add_u32 s8, s8, s9"); e("v_lshlrev_b32 v14, 4, v1")
    e(f"buffer_load_dwordx4 v[212:215], v14, {S(76)}, s8 offen"); e(f"buffer_load_dwordx4 v[216:219], v14, {S(76)}, s8 offen offset:1024")
    e(f"buffer_load_dwordx4 v[220:223], v14, {S(72)}, 0 offen")
    nonce_issue(25,88)
    e("s_andn2_b32 s8, s4, 31"); e("s_lshl_b32 s8, s8, 14"); e("s_and_b32 s9, s4, 31"); e("s_lshl_b32 s9, s9, 9"); e("s_add_u32 s13, s8, s9"); e(f"s_add_u32 s13, s13, {WS_XT}")
    e("v_lshlrev_b32 v8, 16, v9"); e("v_lshl_add_u32 v8, v3, 4, v8")
    e("s_mov_b32 s14, 0x05040100"); e("s_mov_b32 s15, 0x07060302")
    for c in range(4):
        e(f"v_add_u32 v14, {c}, v0"); e("v_lshrrev_b32 v15, 6, v14"); e("v_and_b32 v14, 63, v14")
        e(f"v_mul_u32_u24 v15, {BS}, v15"); e(f"v_lshl_add_u32 v{10+c}, v14, 2, v15")
    e("v_lshrrev_b32 v14, 2, v3"); e("v_and_b32 v15, 3, v3"); e("v_and_b32 v16, 3, v14")
    e("v_mul_u32_u24 v14, 272, v14"); e("v_lshl_add_u32 v14, v15, 2, v14"); e("v_cmp_lt_u32 vcc, v15, v16")
    for i in range(4): e(f"v_mov_b32 v{224+i}, 0")
    e("s_and_saveexec_b64 s[10:11], vcc"); e(f"ds_write_b32 v14, v224 offset:{UB+7*BS}"); e("s_mov_b64 exec, s[10:11]")
    e(f"s_mul_i32 s12, s3, {TB}"); e("v_lshl_add_u32 v16, v1, 2, s12")
    e("v_mul_u32_u24 v17, 272, v3"); e("v_lshl_add_u32 v17, v2, 4, v17"); e("v_add_u32 v17, s12, v17")
    stamp(1); e("s_waitcnt vmcnt(8)"); stamp(2); e("s_mov_b32 m0, s12")
    for r in range(20,25): e(f"v_lshlrev_b32 v{r}, 16, v{r}")
    expbf(24,24); expbf(20,20)
    e("v_mul_f32 v20, v20, v24"); e("v_mul_f32 v21, v21, v24")
    e(f"v_mul_f32 v20, {fl(-1.4426950408889634)}, v20"); e(f"v_mul_f32 v21, {INV2PI}, v21")
    e("v_add_f32 v24, v24, v24"); e("v_mul_f32 v22, v22, v24"); e("v_mul_f32 v23, v23, v24")
    Z8,Z16,Z1,Z2,Z4,Z256=26,28,30,32,34,36
    cexp(Z8,20,21,fl(8),18); cexp(Z16,20,21,fl(16),18)
    e("s_waitcnt vmcnt(0)"); nonce_check(25,88,"C")
    for k in range(4):
        t=228+4*k
        e(f"v_perm_b32 v{t}, v{204+k}, v{200+k}, s14"); e(f"v_mov_b32 v{t+1}, s{NON}"); e(f"v_perm_b32 v{t+2}, v{204+k}, v{200+k}, s15"); e(f"v_mov_b32 v{t+3}, s{NON}")
        e(f"buffer_store_dwordx4 {V(t,4)}, v8, {S(92)}, s13 offen sc1"); e("s_add_u32 s13, s13, 16384")
    e("v_perm_b32 v244, v210, v208, s14"); e("v_perm_b32 v245, v210, v208, s15"); e("v_perm_b32 v246, v211, v209, s14"); e("v_perm_b32 v247, v211, v209, s15")
    e("s_lshl_b32 s8, s4, 12"); e(f"s_add_u32 s8, s8, {WS_C}"); e("v_lshlrev_b32 v9, 4, v0")
    e(f"buffer_store_dwordx4 v[244:247], v9, {S(92)}, s8 offen sc1"); stamp(7)
    tmp=[60]
    def put(row,r,neg):
        t=tmp[0]; tmp[0]=60+(t-59)%4
        e(f"v_cvt_pk_bf16_f32 v{t}, v{r}, {'-' if neg else ''}v{r+1}"); e(f"ds_write_addtid_b32 v{t} offset:{272*row}")
    e("v_mov_b32 v60, 0x3f80"); e("ds_write_addtid_b32 v60"); tmp[0]=61
    put(1,Z8,0); put(2,Z16,0)
    ev,od=Z16,Z8
    for c in range(3,32):
        if c%2: n=40+((c>>1)%2)*2; cmul(n,od,Z16); od=n
        else:   n=44+((c>>1)%2)*2; cmul(n,ev,Z16); ev=n
        put(c,n,0)
    GF=128; RF=160
    for s in range(8): e(f"ds_read_b128 {V(GF+4*s,4)}, v17 offset:{32*s}")
    e("s_lshl_b32 s98, s4, 14"); e(f"s_add_u32 s98, s98, {WS_XT}"); e("v_add_u32 v8, 8192, v9")
    def xtl():
        for q in range(4): e(f"buffer_load_dwordx4 {V(228+4*q,4)}, v{9 if q<2 else 8}, {S(92)}, s98 offen offset:{(q&1)*4096-(q&1)*16 if 0 else 0} sc1") if not (q&1) else e(f"buffer_load_dwordx4 {V(228+4*q,4)}, v{9 if q<2 else 8}, {S(92)}, s97 offen sc1")
    e("s_add_u32 s97, s98, 4096")
    cexp(Z1,20,21,"1.0",18); cexp(Z2,20,21,"2.0",18); cexp(Z4,20,21,"4.0",18); cexp(Z256,20,21,fl(256),18)
    def row(h,reg): return (reg&3)+4*h+8*(reg>>2)
    for k in range(1,8): cmul(64+2*k, 22 if k==1 else 62+2*k, Z256)
    e("s_lshl_b32 s8, s4, 9"); e("s_lshl_b32 s9, s3, 7"); e("s_add_u32 s8, s8, s9"); e(f"s_add_u32 s8, s8, {WS_FC}")
    e("s_waitcnt vmcnt(0) lgkmcnt(0)"); flag_store(18,92,"s8")
    put(row(0,0),22,1); cmul(40,22,Z1); put(row(0,1),40,1)
    ev,od=22,40
    for j in range(2,8):
        if j%2: n=42 if od!=42 else 40; cmul(n,od,Z2); od=n
        else:   n=44 if ev!=44 else 46; cmul(n,ev,Z2); ev=n
        put(row(0,j),n,1)
    put(row(0,8),66,1); cmul(40,66,Z2); put(row(0,9),40,1); cmul(42,66,Z4); put(row(0,10),42,1)
    cmul(44,40,Z4); put(row(0,11),44,1); cmul(46,66,Z8); put(row(0,12),46,1)
    for (h,r0,b) in ((0,13,68),(1,0,70)):
        put(row(h,r0),b,1); cmul(40,b,Z4); put(row(h,r0+1),40,1); cmul(42,b,Z8); put(row(h,r0+2),42,1)
    for k in range(4):
        put(row(1,3+2*k),72+2*k,1); cmul(44+2*(k%2),72+2*k,Z8); put(row(1,4+2*k),44+2*(k%2),1)
    for s in range(8): e(f"ds_read_b128 {V(RF+4*s,4)}, v17 offset:{32*s}")
    D=64; stamp(3)
    for s in range(8):
        e(f"s_waitcnt lgkmcnt({7-s})")
        e(f"v_mfma_f32_32x32x16_bf16 {V(D,16)}, {V(RF+4*s,4)}, {V(GF+4*s,4)}, {'0' if s==0 else V(D,16)}")
    xtl()
    def uput(q):
        for c in range(4):
            e(f"ds_write_b32 v{10+c}, v{228+4*q} offset:{UB+(7+4*q)*BS+272*c}"); e(f"ds_write_b32 v{10+c}, v{230+4*q} offset:{UB+(7+4*q)*BS+272*(4+c)}")
    e("v_lshl_add_u32 v16, v1, 4, s12"); e("s_xor_b32 s13, s3, 1"); e(f"s_mul_i32 s13, s13, {TB}"); e("v_lshl_add_u32 v17, v1, 4, s13")
    e("s_nop 7")
    for k in range(4): e(f"ds_write_b128 v16, {V(D+4*k,4)} offset:{1024*k}")
    e("s_waitcnt lgkmcnt(0)"); e("s_barrier")
    for k in range(4): e(f"ds_read_b128 {V(80+4*k,4)}, v17 offset:{1024*k}")
    e("s_waitcnt lgkmcnt(0)"); e("s_barrier")
    for k in range(8): e(f"v_pk_add_f32 {V(D+2*k)}, {V(D+2*k)}, {V(80+2*k)}")
    e("v_lshlrev_b32 v16, 4, v0")
    for k in range(3): e(f"ds_write_b128 v16, v[224:227] offset:{UB+4096*k}")
    e("v_min_u32 v16, 3152, v16"); e(f"ds_write_b128 v16, v[224:227] offset:{UB+12288}")
    e("s_mul_i32 s12, s6, 8960"); e("s_mul_i32 s13, s7, 4480"); e("s_add_u32 s13, s13, s12")
    e("v_and_b32 v16, 15, v1"); e("v_lshl_add_u32 v16, v16, 4, s13"); e("ds_write_b128 v16, v[224:227] offset:4096")
    e("v_sub_u32 v16, 31, v3"); e("v_lshl_add_u32 v16, v16, 4, s13")
    e("v_and_b32 v17, 1, v1"); e("v_cmp_eq_u32 vcc, 1, v17"); e("s_nop 1")
    def chunk(kb,el,r):
        for q in range(4):
            hi=6+r-2*q
            e(f"v_cvt_pk_bf16_f32 v{80+q}, v{el[hi]}, v{el[hi-1]}")
        e(f"ds_write_b128 v16, v[80:83] offset:{512*(7-kb)}"); e("s_nop 0")
    def els(lst,prev):
        d={i:x for i,x in enumerate(lst)}; d[-1]=prev; return d
    def r2(b): return els([b,b,b,b+1,b+1,b+1,b+2,b+2],b)
    for k in range(4): e(f"v_cndmask_b32 v{84+k}, v{D+3+2*k}, v{D+4+2*k}, vcc")
    e("s_cmp_eq_u32 s7, 0"); e("s_cbranch_scc1 C_R0")
    for r in (1,0):
        if r==0: lab("C_R0")
        e("s_mov_b32 exec_hi, 0")
        chunk(0,els([D+i for i in range(8)],224),r)
        chunk(1,els([D+8,D+8,D+9,D+10,D+10,D+10,D+11,D+12],D+8),r)
        chunk(2,r2(D+13),r)
        if r==0:
            e(f"v_cvt_pk_bf16_f32 v80, v{D+7}, v{D+7}"); e(f"ds_write_b16 v16, v80 offset:{512*7-2}")
        e("s_mov_b32 exec_hi, -1"); e("s_mov_b32 exec_lo, 0")
        chunk(3,r2(D),r)
        for k in range(4):
            a=D+3+2*k; chunk(4+k,els([a,a,a,a,84+k,a+1,a+1,a+1],a),r)
        e("s_mov_b32 exec_lo, -1")
        if r==1: e("s_branch C_RD")
    lab("C_RD")
    stamp(4)
    for rr in range(2):
        for i in range(4):
            x=212+4*rr+i
            e(f"v_lshlrev_b32 v84, 16, v{x}"); e(f"v_and_b32 v85, 0xffff0000, v{x}")
            e(f"v_lshlrev_b32 v86, 16, v{220+i}"); e(f"v_and_b32 v87, 0xffff0000, v{220+i}")
            e("v_pk_mul_f32 v[84:85], v[84:85], v[86:87]"); e("v_cvt_pk_bf16_f32 v84, v84, v85")
            e("v_and_b32 v85, 0xffff0000, v84"); e("v_lshlrev_b32 v84, 16, v84")
            if i==0: e(f"v_add_f32 v{88+rr}, v84, v85")
            else: e(f"v_add_f32 v{88+rr}, v{88+rr}, v84"); e(f"v_add_f32 v{88+rr}, v{88+rr}, v85")
    for md in ("row_shr:1","row_shr:2","row_shr:4","row_shr:8","row_bcast:15 row_mask:0xa","row_bcast:31 row_mask:0xc"):
        e("s_nop 0")
        for rr in range(2): e(f"v_add_f32_dpp v{88+rr}, v{88+rr}, v{88+rr} {md}")
    for rr in range(2):
        bfr(88+rr,88+rr); e(f"v_mul_f32 v{88+rr}, {fl(-1.4426950408889634)}, v{88+rr}"); e(f"v_exp_f32 v{88+rr}, v{88+rr}"); e("s_nop 0")
        e(f"v_add_f32 v{88+rr}, 1.0, v{88+rr}"); e(f"v_rcp_f32 v{88+rr}, v{88+rr}"); e("s_nop 0")
    e("v_cvt_pk_bf16_f32 v88, v88, v89"); e(f"v_mov_b32 v89, s{NON}")
    e("s_lshr_b32 s8, s4, 3"); e("s_lshr_b32 s9, s4, 1"); e("s_xor_b32 s8, s8, s9"); e("s_lshr_b32 s9, s4, 2"); e("s_xor_b32 s8, s8, s9"); e("s_and_b32 s8, s8, 1"); e("s_lshl_b32 s8, s8, 6")
    e("s_and_b32 s9, s4, 7"); e("s_lshl_b32 s9, s9, 3"); e("s_add_u32 s8, s8, s9")
    e("s_lshr_b32 s9, s4, 4"); e("s_lshl_b32 s9, s9, 9"); e("s_add_u32 s8, s8, s9")
    e("s_sub_u32 s9, 3, s3"); e("s_lshl_b32 s9, s9, 7"); e("s_add_u32 s8, s8, s9"); e(f"s_add_u32 s8, s8, {WS_G}")
    e("v_cmp_eq_u32 vcc, 63, v1"); e("v_mov_b32 v18, 0x7ffffff0"); e("s_nop 0"); e("v_cndmask_b32 v18, v18, v224, vcc")
    e(f"buffer_store_dwordx2 v[88:89], v18, {S(92)}, s8 offen sc1")
    stamp(5); e("s_waitcnt vmcnt(1)")
    lab("C_XL")
    e(f"v_xor_b32 v18, s{NON}, v229")
    for r in range(231,244,2): e(f"v_xor_b32 v19, s{NON}, v{r}"); e("v_or_b32 v18, v18, v19")
    e("v_cmp_ne_u32 vcc, 0, v18"); e("s_nop 4"); e("s_cbranch_vccz C_XOK")
    e("s_sleep 8"); xtl(); e("s_waitcnt vmcnt(0)"); e("s_branch C_XL")
    lab("C_XOK"); stamp(6)
    for q in range(4): uput(q)
    e("v_lshl_or_b32 v18, v5, 3, v4"); e("v_sub_u32 v18, v2, v18"); e("v_add_u32 v18, 15, v18"); e("v_and_b32 v19, 1, v1"); e("v_mul_u32_u24 v19, 4480, v19")
    e("v_lshl_add_u32 v20, v18, 4, v19"); e("s_xor_b32 s9, s7, 1"); e("s_lshl_b32 s8, s9, 10"); e("s_add_u32 s8, s8, s12"); e("v_add_u32 v20, s8, v20")
    e("v_and_b32 v18, 3, v1"); e("v_bfe_u32 v19, v1, 3, 1"); e("v_lshl_or_b32 v22, v19, 2, v18")
    e("v_bfe_u32 v19, v1, 4, 1"); e("v_lshl_or_b32 v23, v5, 1, v19")
    e(f"v_mul_u32_u24 v18, {BS}, v22"); e("v_mul_u32_u24 v19, 272, v23"); e("v_add_u32 v18, v18, v19"); e("v_lshl_add_u32 v21, v2, 4, v18")
    e(f"s_mul_i32 s8, s9, {4*BS}"); e("s_mul_i32 s9, s6, 1088"); e("s_add_u32 s8, s8, s9"); e("v_add_u32 v21, s8, v21")
    e("s_waitcnt lgkmcnt(0)"); e("s_barrier")
    stamp(8); T0,T1,F=64,80,96; NB=3
    def rd(s):
        f=F+16*(s%NB)
        ob=UB+(3-(s>>3))*BS+224-32*(s&7)
        e(f"ds_read_b128 {V(f,4)}, v20 offset:{3040-32*s}"); e(f"ds_read_b128 {V(f+4,4)}, v21 offset:{ob}")
        e(f"ds_read_b128 {V(f+8,4)}, v21 offset:{ob+8*BS}"); e(f"ds_read_b128 {V(f+12,4)}, v20 offset:{992-32*s}")
    rd(0); rd(1)
    for s in range(32):
        f=F+16*(s%NB)
        if s+2<32: rd(s+2); e("s_waitcnt lgkmcnt(8)")
        else: e(f"s_waitcnt lgkmcnt({4 if s==30 else 0})")
        e(f"v_mfma_f32_32x32x16_bf16 {V(T0,16)}, {V(f,4)}, {V(f+4,4)}, {'0' if s==0 else V(T0,16)}")
        e(f"v_mfma_f32_32x32x16_bf16 {V(T1,16)}, {V(f,4)}, {V(f+8,4)}, {'0' if s==0 else V(T1,16)}")
        e(f"v_mfma_f32_32x32x16_bf16 {V(T1,16)}, {V(f+12,4)}, {V(f+4,4)}, {V(T1,16)}")
    stamp(9); e("s_barrier")
    e("s_lshl_b32 s8, s3, 12"); e("v_lshl_add_u32 v16, v1, 4, s8"); e("v_xor_b32 v17, 4096, v16")
    e("s_lshl_b32 s8, s5, 12"); e("s_lshl_b32 s9, s7, 11"); e("s_add_u32 s8, s8, s9"); e(f"s_add_u32 s8, s8, {WS_Y}")
    e("v_lshl_or_b32 v18, v22, 2, v23"); e("v_lshl_or_b32 v18, v18, 1, v2"); e("v_lshlrev_b32 v18, 4, v18")
    e("s_nop 3"); e("s_cmp_eq_u32 s7, 0"); e("s_cbranch_scc1 C_F0")
    for ww in (1,0):
        if ww==0: lab("C_F0")
        keep,send=(T1,T0) if ww else (T0,T1)
        for k in range(4): e(f"ds_write_b128 v16, {V(send+4*k,4)} offset:{1024*k}")
        e("s_waitcnt lgkmcnt(0)"); e("s_barrier")
        for k in range(4): e(f"ds_read_b128 {V(96+4*k,4)}, v17 offset:{1024*k}")
        e("s_waitcnt lgkmcnt(0)")
        for k in range(8):
            e(f"v_pk_add_f32 {V(96+2*k)}, {V(96+2*k)}, {V(keep+2*k)}"); e(f"v_cvt_pk_bf16_f32 v{112+k}, v{96+2*k}, v{97+2*k}")
        e(f"buffer_store_dwordx4 v[112:115], v18, {S(92)}, s8 offen sc1"); e(f"buffer_store_dwordx4 v[116:119], v18, {S(92)}, s8 offen offset:1024 sc1")
        e("s_lshl_b32 s8, s5, 7"); e(f"s_add_u32 s8, s8, {WS_FY+65536*ww}"); e("s_waitcnt vmcnt(0)"); flag_store(18,92,"s8")
        stamp_end(10,8<<20); e("s_endpgm")
```

```python
from common import *
def gen():
    lab("K1_GEMM"); stamp_mv(63); e("s_setprio 3")
    e("s_and_b32 s6, s2, 7"); e("s_bfe_u32 s7, s2, 0x50003")
    e("s_lshr_b32 s4, s6, 1"); e("s_lshl_b32 s4, s4, 2"); e("s_and_b32 s8, s7, 3"); e("s_add_u32 s4, s4, s8")
    e("s_and_b32 s5, s6, 1"); e("s_lshl_b32 s5, s5, 3"); e("s_lshr_b32 s8, s7, 2"); e("s_add_u32 s5, s5, s8")
    e("s_bfe_u32 s88, s7, 0x10002"); e("s_and_b32 s89, s6, 1"); e("s_lshl_b32 s89, s89, 2"); e("s_lshr_b32 s9, s7, 3"); e("s_add_u32 s89, s89, s9")
    e("s_and_b32 s90, s7, 3"); e("s_lshl_b32 s90, s90, 1"); e("s_add_u32 s90, s90, s8"); e("s_lshl_b32 s90, s90, 7")
    e("v_lshrrev_b32 v6, 3, v1"); e("v_and_b32 v7, 7, v1")
    e("v_bfe_u32 v8, v6, 1, 1")
    e("v_xor_b32 v7, v7, v8")
    e("v_and_b32 v9, 1, v6"); e("v_lshl_or_b32 v9, v9, 3, v8")
    e("v_lshrrev_b32 v10, 2, v6"); e("v_lshl_or_b32 v9, v10, 4, v9")
    e("s_lshl_b32 s8, s3, 5"); e("v_add_u32 v9, s8, v9")
    for q in range(4):
        e(f"v_xor_b32 v10, {2*q}, v7"); e(f"v_lshlrev_b32 v10, 4, v10")
        e(f"v_add_u32 v11, {2*q}, v9"); e(f"v_lshl_add_u32 v{12+q}, v11, 10, v10")
    e("s_and_b32 s8, s3, 1"); e("s_lshl_b32 s9, s8, 2"); e("s_lshl_b32 s8, s8, 4")
    for qq in range(2):
        e(f"v_xor_b32 v10, s9, v7"); e(f"v_xor_b32 v10, {2*qq}, v10"); e("v_lshlrev_b32 v10, 4, v10")
        e(f"v_add3_u32 v11, s8, v6, {8*qq}"); e(f"v_lshl_add_u32 v{16+qq}, v11, 10, v10")
    e("s_waitcnt lgkmcnt(0)")
    e("s_lshl_b32 s8, s4, 17"); srd(56,16,131072,"s8")
    e("s_cmp_lt_u32 s3, 2"); e("s_cselect_b32 s10, s36, s38"); e("s_cselect_b32 s11, s37, s39")
    e("s_lshl_b32 s8, s5, 15"); srd(60,10,32768,"s8")
    srd(64,32,1024); srd(68,34,1024); srd(72,44,1024)
    e("s_lshl_b32 s8, s5, 13"); e(f"s_add_u32 s8, s8, {WS_E}"); srd(76,54,8192,"s8")
    srd(80,52,256)
    e("s_lshl_b32 s8, s4, 18"); srd(84,54,262144,"s8")
    e("s_lshl_b32 s8, s5, 6"); e("v_lshl_add_u32 v10, v3, 1, s8")
    e(f"buffer_load_ushort v20, v10, {S(64)}, 0 offen"); e(f"buffer_load_ushort v21, v10, {S(68)}, 0 offen"); e(f"buffer_load_ushort v22, v10, {S(72)}, 0 offen")
    e("s_lshl_b32 s8, s4, 9"); e("v_lshl_add_u32 v18, v3, 4, s8"); e("v_mov_b32 v10, 0x7ffffff0")
    e("v_cmp_lt_u32 vcc, 223, v0"); e("v_mov_b32 v24, 0"); e("v_mov_b32 v25, 0"); e("v_cndmask_b32 v18, v10, v18, vcc")
    e("v_mov_b32 v26, 0"); e("v_mov_b32 v27, 0")
    srd(92,54,WSSZ)
    e("s_lshl_b32 s13, s3, 12"); e("s_lshl_b32 s14, s3, 11"); e("s_add_u32 s14, s14, 16384")
    def dma(st):
        b=(st%3)*24576
        e(f"s_add_u32 s15, s90, {128*st}"); e("s_and_b32 s15, s15, 1023")
        for q in range(4):
            e(f"s_add_u32 m0, s13, {b+1024*q}"); e("s_nop 0"); e(f"buffer_load_dwordx4 v{12+q}, {S(56)}, s15 offen lds")
        for q in range(2):
            e(f"s_add_u32 m0, s14, {b+1024*q}"); e("s_nop 0"); e(f"buffer_load_dwordx4 v{16+q}, {S(60)}, s15 offen lds")
    for st in range(3): dma(st)
    for s in range(4):
        e(f"v_or_b32 v10, {2*s}, v2"); e("v_xor_b32 v10, v10, v4"); e("v_lshlrev_b32 v10, 4, v10")
        e(f"v_lshl_add_u32 v{28+s}, v3, 7, v10"); e(f"v_add_u32 v{32+s}, s13, v{28+s}"); e(f"v_add_u32 v{28+s}, 16384, v{28+s}")
    stamp(1); e("s_waitcnt vmcnt(18)"); stamp(2)
    for r in (20,21,22): e(f"v_lshlrev_b32 v{r}, 16, v{r}")
    expbf(22,22)
    e("v_mul_f32 v36, v22, v20"); e("v_mul_f32 v37, v22, v21")
    e(f"v_mul_f32 v36, {LOG2E}, v36"); e(f"v_mul_f32 v37, {INV2PI}, v37")
    cexp(40,36,37,"1.0",38); cexp(42,36,37,fl(8),38);
    e("s_lshl_b32 s8, s3, 2"); e("s_sub_u32 s8, 15, s8"); e("v_sub_u32 v10, s8, v2"); e("v_lshlrev_b32 v10, 7, v10"); e("v_cvt_f32_u32 v10, v10")
    cexp(44,36,37,"v10",38); e(f"v_add_f32 v10, {fl(-256)}, v10"); cexp(46,36,37,"v10",38)
    e("v_lshrrev_b32 v10, 5, v0"); e("v_lshlrev_b32 v10, 4, v10"); e("v_cvt_f32_u32 v10, v10")
    cexp(48,36,37,"v10",38)
    e("v_mul_f32 v38, v20, v20"); e("v_fmac_f32 v38, v21, v21"); e("v_rcp_f32 v38, v38")
    e("v_add_f32 v52, -1.0, v40"); e("v_mov_b32 v53, v41"); e("v_add_f32 v38, v38, v38")
    e("v_mul_f32 v54, v20, v38"); e("v_mul_f32 v55, v21, v38"); e("v_sub_f32 v55, 0, v55")
    cmul(50,52,54)
    RE=64; IM=80; FR=96
    e("v_bfe_u32 v19, v1, 2, 1"); e("v_and_b32 v10, 3, v1"); e("v_lshlrev_b32 v10, 7, v10"); e("v_lshl_add_u32 v19, v19, 11, v10")
    e("v_bfe_u32 v57, v1, 4, 1"); e("v_and_b32 v10, 15, v1"); e("v_lshlrev_b32 v10, 7, v10"); e("v_lshl_add_u32 v57, v57, 13, v10")
    e("s_lshl_b32 s91, s89, 14"); e("s_lshl_b32 s8, s3, 11"); e("s_add_u32 s91, s91, s8"); e(f"s_add_u32 s91, s91, {WS_FC}")
    e("s_lshl_b32 s8, s89, 17"); e(f"s_add_u32 s8, s8, {WS_C}"); srd(64,54,131072,"s8")
    e("s_lshl_b32 s8, s3, 14"); e("v_lshl_add_u32 v6, v1, 4, s8"); e("s_and_b32 s8, s3, 1"); e("s_lshl_b32 s8, s8, 16"); e("v_add_u32 v6, s8, v6"); e("v_xor_b32 v7, 0x10000, v6")
    def CR(ks,nt): return (192 if ks<8 else 128-64)+8*ks+4*nt
    def cld(k0):
        for ks in range(k0,k0+8):
            if ks%4==0: e(f"s_mov_b32 s15, {1024*ks}")
            for nt in range(2): e(f"buffer_load_dwordx4 {V(CR(ks,nt),4)}, v{6+nt}, {S(64)}, s15 offen offset:{1024*(ks%4)} sc1")
    def rds(k,s):
        b=(k%3)*24576; f=FR+48*(k%2)+12*s
        return [f"ds_read_b128 {V(f,4)}, v{32+s} offset:{b}", f"ds_read_b128 {V(f+4,4)}, v{28+s} offset:{b}", f"ds_read_b128 {V(f+8,4)}, v{28+s} offset:{b+4096}"]
    e("s_waitcnt vmcnt(12)"); e("s_barrier"); stamp(3)
    for s in range(4):
        for x in rds(0,s): e(x)
    waits=[6,6,6,6,6,8,2,None]
    for k in range(8):
        if k<7: e(f"s_waitcnt vmcnt({waits[k]}) lgkmcnt(0)"); e("s_barrier")
        else: e("s_waitcnt lgkmcnt(0)")
        if k in (2,6): stamp({2:4,6:5}[k])
        fill=[]
        if k<7:
            for s in range(4): fill.append(rds(k+1,s))
        n0=len(L)
        if k+3<8: dma(k+3)
        dl=L[n0:]; del L[n0:]
        dg=[dl[:5]]+[dl[5+3*i:8+3*i] for i in range(5)] if dl else []
        i=0
        for s in range(4):
            for (acc,o) in ((RE,4),(IM,8)):
                f=FR+48*(k%2)+12*s
                c="0" if (k==0 and s==0) else V(acc,16)
                e(f"v_mfma_f32_32x32x16_bf16 {V(acc,16)}, {V(f,4)}, {V(f+o,4)}, {c}")
                if i<len(dg): L.extend(dg[i])
                if i>=1 and i-1<len(fill):
                    for x in fill[i-1]: e(x)
                i+=1
        if k==4: nonce_issue(22,80); e(f"buffer_load_dword v23, v57, {S(92)}, s91 offen sc1")
    if os.environ.get("EXP") in ("1","2"): stamp_end(6,8<<20); e("s_endpgm")
    EB=49152
    e("s_nop 1"); e("v_lshlrev_b32 v56, 4, v0"); e(f"ds_write_b128 v56, v[24:27] offset:{EB}")
    e("v_lshrrev_b32 v56, 5, v0"); e("v_lshlrev_b32 v56, 9, v56"); e("v_lshl_add_u32 v56, v3, 3, v56")
    e("s_nop 7")
    def step(dr,di,pr,pi,t):
        e(f"v_pk_fma_f32 {V(dr)}, {V(40)}, {V(pr)}, {V(RE+2*t)} op_sel:[0,0,0] op_sel_hi:[0,1,1]")
        e(f"v_pk_fma_f32 {V(di)}, {V(40)}, {V(pi)}, {V(IM+2*t)} op_sel:[0,0,0] op_sel_hi:[0,1,1]")
        e(f"v_pk_fma_f32 {V(dr)}, {V(40)}, {V(pi)}, {V(dr)} op_sel:[1,0,0] op_sel_hi:[1,1,1] neg_lo:[1,0,0] neg_hi:[1,0,0]")
        e(f"v_pk_fma_f32 {V(di)}, {V(40)}, {V(pr)}, {V(di)} op_sel:[1,0,0] op_sel_hi:[1,1,1]")
    pr,pi=RE,IM
    for t in range(1,8):
        dr,di=(96,98) if t%2 else (100,102)
        step(dr,di,pr,pi,t); pr,pi=dr,di
    e("v_mov_b32 v58, v96"); e("v_mov_b32 v59, v98"); e("v_mov_b32 v60, v97"); e("v_mov_b32 v61, v99")
    e(f"ds_write_b64 v56, v[58:59] offset:{EB+4096}"); e(f"ds_write_b64 v56, v[60:61] offset:{EB+4096+256}")
    e("s_waitcnt lgkmcnt(0)"); e("s_barrier")
    for j in range(14): e(f"ds_read_b64 {V(96+2*j)}, v56 offset:{EB+512+256*j}")
    for j in range(1,14):
        e(f"s_waitcnt lgkmcnt({13-j})"); cfma(96+2*j,42,96+2*j-2,96+2*j)
    cfma(58,42,122,58); cfma(60,42,58,60)
    e("s_waitcnt vmcnt(0)"); nonce_check(22,80,"G")
    e("v_mov_b32 v24, v60"); e(f"v_mov_b32 v25, s{NON}"); e("v_mov_b32 v26, v61"); e(f"v_mov_b32 v27, s{NON}")
    e(f"buffer_store_dwordx4 v[24:27], v18, {S(76)}, 0 offen sc1")
    stamp(6); flag_check(23,57,92,"s91","GC"); cld(0)
    e("s_lshl_b32 s8, s4, 9"); e("s_lshl_b32 s9, s3, 11"); e("s_add_u32 s8, s8, s9"); e("s_sub_u32 s8, s8, 8192"); e("v_lshl_add_u32 v12, v1, 4, s8"); e("v_add_u32 v13, 1024, v12")
    G=128
    def gl():
        for j in range(2): e(f"buffer_load_dwordx4 {V(G+4*j,4)}, v{12+j}, {S(76)}, 0 offen sc1")
    for t in range(8):
        e(f"v_pk_mul_f32 {V(96)}, {V(50)}, {V(IM+2*t)} op_sel:[1,0] op_sel_hi:[1,1]")
        e(f"v_pk_mul_f32 {V(IM+2*t)}, {V(50)}, {V(IM+2*t)} op_sel:[0,0] op_sel_hi:[0,1]")
        e(f"v_pk_fma_f32 {V(IM+2*t)}, {V(50)}, {V(RE+2*t)}, {V(IM+2*t)} op_sel:[1,0,0] op_sel_hi:[1,1,1]")
        e(f"v_pk_fma_f32 {V(RE+2*t)}, {V(50)}, {V(RE+2*t)}, {V(96)} op_sel:[0,0,0] op_sel_hi:[0,1,1] neg_lo:[0,0,1] neg_hi:[0,0,1]")
    e("v_lshlrev_b32 v14, 3, v0"); e("v_lshlrev_b32 v15, 3, v3")
    gl()
    lab("G_POLL")
    e("s_waitcnt vmcnt(0)")
    e("v_mov_b32 v10, 0")
    for j in range(2):
        e(f"v_ashrrev_i32 v11, 31, v{12+j}"); e(f"v_xor_b32 v{G+4*j+1}, s{NON}, v{G+4*j+1}"); e(f"v_xor_b32 v{G+4*j+3}, s{NON}, v{G+4*j+3}")
        e(f"v_or_b32 v{G+4*j+1}, v{G+4*j+1}, v{G+4*j+3}"); e(f"v_bfi_b32 v11, v11, 0, v{G+4*j+1}"); e("v_or_b32 v10, v10, v11")
    e("v_cmp_ne_u32 vcc, 0, v10"); e("s_nop 4"); e("s_cbranch_vccz G_POLL_OK")
    gl(); e("s_branch G_POLL")
    lab("G_POLL_OK"); stamp(8)
    for j in range(2): e(f"v_mov_b32 v{G+4*j+1}, v{G+4*j+2}")
    cmul(96,44,G); cfma(96,46,G+4,96)
    e(f"ds_write_b64 v14, v[96:97] offset:{EB+8192}"); e("s_waitcnt lgkmcnt(0)"); e("s_barrier"); stamp(7)
    for j in range(8): e(f"ds_read_b64 {V(G+2*j)}, v15 offset:{EB+8192+256*j}")
    e("s_waitcnt lgkmcnt(0)")
    for st in (8,4,2):
        for j in range(0,st,2): e(f"v_pk_add_f32 {V(G+j)}, {V(G+j)}, {V(G+j+st)}")
    HX=G
    cmul(98,48,HX)
    e(f"v_pk_add_f32 {V(122)}, {V(122)}, {V(98)}")
    cfma(58,42,98,58)
    cmul(100,50,122); cmul(102,50,58)
    e("v_mov_b32 v96, v100"); e("v_mov_b32 v97, v102"); e("v_mov_b32 v98, v101"); e("v_mov_b32 v99, v103")
    e("v_lshrrev_b32 v56, 5, v0"); e("v_mul_u32_u24 v56, 2304, v56"); e("v_lshl_add_u32 v56, v3, 2, v56")
    pr,pi=96,98
    for t in range(8):
        dr,di=(104,106) if t%2==0 else (108,110)
        step(dr,di,pr,pi,t); pr,pi=dr,di
        e(f"v_cvt_pk_bf16_f32 v{112+2*(t%2)}, v{dr}, -v{di}"); e(f"v_cvt_pk_bf16_f32 v{113+2*(t%2)}, v{dr+1}, -v{di+1}")
        e(f"ds_write_b32 v56, v{112+2*(t%2)} offset:{144*t}"); e(f"ds_write_b32 v56, v{113+2*(t%2)} offset:{144*(t+8)}")
    e("v_lshl_or_b32 v10, v5, 3, v4"); e("v_and_b32 v11, 1, v1"); e("v_lshl_add_u32 v10, v10, 3, v11")
    e("s_lshl_b32 s8, s3, 1"); e("s_sub_u32 s8, 6, s8"); e("v_add_u32 v10, s8, v10")
    e("v_mul_u32_u24 v10, 144, v10"); e("v_lshl_add_u32 v10, v2, 4, v10")
    e("s_lshl_b32 s8, s3, 16"); e("s_lshl_b32 s9, s5, 12"); e("s_add_u32 s8, s8, s9"); e("v_lshlrev_b32 v11, 4, v1")
    e("s_waitcnt lgkmcnt(0)"); e("s_barrier")
    for k in range(4): e(f"ds_read_b128 {V(96+4*k,4)}, v10 offset:{32*k}")
    for k in range(4):
        e(f"s_waitcnt lgkmcnt({3-k})"); e(f"buffer_store_dwordx4 {V(96+4*k,4)}, v11, {S(84)}, s8 offen offset:{1024*k} sc1")
    e("s_lshl_b32 s8, s4, 13"); e(f"s_add_u32 s8, s8, {WS_FH}"); e("s_lshl_b32 s9, s3, 11"); e("s_add_u32 s9, s9, s8"); e("s_lshl_b32 s10, s5, 7"); e("s_add_u32 s9, s9, s10")
    e("s_lshl_b32 s10, s88, 12"); e("s_add_u32 s91, s8, s10"); e("s_lshl_b32 s10, s3, 9"); e("s_add_u32 s91, s91, s10")
    e("v_mov_b32 v9, v19")
    e("s_barrier"); stamp(9)
    e("s_waitcnt vmcnt(0)"); stamp(14); flag_store(10,92,"s9"); cld(8)
    e(f"buffer_load_dword v8, v9, {S(92)}, s91 offen sc1")
    import k2; k2.gen(CR)
```

```python
from common import *
def gen(CR):
    stamp_mv(5)
    e("s_mov_b32 s5, s88"); e("s_mov_b32 s6, s89")
    e("s_lshl_b32 s8, s4, 18"); e("s_lshl_b32 s9, s5, 17"); e("s_add_u32 s8, s8, s9"); srd(56,54,131072,"s8")
    srd(68,16,2097152); srd(72,28,1024); srd(76,46,1024); srd(80,50,4194304)
    e("s_mul_i32 s13, s3, 18432"); e("v_lshl_add_u32 v4, v1, 4, s13")
    e("s_lshr_b32 s8, s3, 1"); e("s_xor_b32 s8, s8, s3"); e("s_and_b32 s8, s8, 1"); e("s_lshl_b32 s8, s8, 16"); e("v_xor_b32 v6, s8, v6"); e("v_xor_b32 v7, s8, v7")
    e("s_waitcnt vmcnt(0)"); flag_check(8,9,92,"s91","GH"); stamp(10)
    for ks in range(16):
        if ks%4==0 or ks>=7: e(f"s_mov_b32 s15, {1024*ks}")
        o=1024*(ks%4) if ks<7 else 0
        for mt in range(2):
            if ks<7: e(f"buffer_load_dwordx4 {V(8+8*ks+4*mt,4)}, v{6+mt}, {S(56)}, s15 offen offset:{o} sc1")
            else:
                e(f"s_add_u32 m0, s13, {((ks-7)*2+mt)*1024-o}"); e("s_nop 0")
                e(f"buffer_load_dwordx4 v{6+mt}, {S(56)}, s15 offen offset:{o} sc1 lds")
    ACC=64
    def mm(ks,h):
        for (mt,nt) in ((0,0),(0,1),(1,1),(1,0)):
            acc=V(ACC+16*(2*mt+nt),16)
            e(f"v_mfma_f32_32x32x16_bf16 {acc}, {V(h+4*mt,4)}, {V(CR(ks,nt),4)}, {'0' if ks==0 else acc}")
    for ks in range(7):
        e(f"s_waitcnt vmcnt({30-2*ks})"); mm(ks,8+8*ks)
    e("s_lshr_b32 s10, s3, 1"); e("s_lshl_b32 s8, s5, 1"); e("s_add_u32 s10, s10, s8")
    e("s_and_b32 s8, s3, 1"); e("s_lshl_b32 s8, s8, 5"); e("s_lshl_b32 s9, s6, 6"); e("s_add_u32 s8, s8, s9"); e("v_add_u32 v240, s8, v3")
    e("s_lshl_b32 s8, s4, 2"); e("s_add_u32 s8, s8, s10")
    e("s_and_b32 s11, s8, 32"); e("s_add_u32 s11, s11, s8"); e(f"s_lshl_b32 s11, s11, 5"); e(f"s_add_u32 s11, s11, {WS_Y}"); e("v_lshlrev_b32 v241, 12, v240"); e("v_lshl_add_u32 v241, v2, 4, v241")
    e(f"s_lshl_b32 s12, s8, 7"); e(f"s_add_u32 s12, s12, {WS_G}"); e("v_lshlrev_b32 v242, 6, v2")
    e("v_lshlrev_b32 v243, 1, v240")
    e("s_lshl_b32 s8, s4, 7"); e("s_lshl_b32 s9, s10, 1"); e("s_sub_u32 s8, s8, s9"); e("s_add_u32 s8, s8, 6")
    e("v_lshl_add_u32 v244, v2, 6, s8"); e("v_xor_b32 v245, 64, v244")
    e("v_lshl_add_u32 v244, v244, 10, v243"); e("v_lshl_add_u32 v245, v245, 10, v243")
    e("v_lshlrev_b32 v246, 1, v244"); e("v_lshlrev_b32 v247, 1, v245")
    for j in range(8): e(f"s_mov_b32 s{16+j}, {8192*j}"); e(f"s_mov_b32 s{24+j}, {16384*j}")
    X=192; Y=208; G=216; DA=232; DB=233
    def par(j): return ((j>>1)^(j>>2))&1
    epi=[f"buffer_load_dwordx4 {V(Y,4)}, v241, {S(92)}, s11 offen sc1", f"buffer_load_dwordx4 {V(Y+4,4)}, v241, {S(92)}, s11 offen offset:1024 sc1"]
    epi+=[f"buffer_load_dwordx4 {V(G+4*q,4)}, v242, {S(92)}, s12 offen offset:{16*q} sc1" for q in range(4)]
    epi+=[f"buffer_load_ushort v{DA}, v243, {S(72)}, 0 offen", f"buffer_load_ushort v{DB}, v243, {S(76)}, 0 offen"]
    for j in range(8):
        for r in range(2): epi.append(f"buffer_load_ushort v{X+2*j+r}, v{244+par(j)}, {S(68)}, s{16+j} offen offset:{1024*r}")
    e("s_lshr_b32 s14, s4, 3"); e("s_lshl_b32 s14, s14, 16"); e(f"s_add_u32 s14, s14, {WS_FY}"); e("v_lshlrev_b32 v234, 7, v240")
    e(f"buffer_load_dword v235, v234, {S(92)}, s14 offen sc1")
    for x in epi[2:]: e(x)
    ne=len(epi)-1
    def hrd(ks):
        e(f"s_waitcnt vmcnt({ne+2*(15-ks)})")
        for mt in range(2): e(f"ds_read_b128 {V(8+8*((ks-7)%7)+4*mt,4)}, v4 offset:{((ks-7)*2+mt)*1024}")
    hrd(7); hrd(8)
    for ks in range(7,16):
        if ks+2<16: hrd(ks+2); e("s_waitcnt lgkmcnt(4)")
        else: e(f"s_waitcnt lgkmcnt({2*(15-ks)})")
        mm(ks,8+8*((ks-7)%7))
    stamp(11)
    e(f"s_waitcnt vmcnt({ne-1})"); flag_check(235,234,92,"s14","GY"); e(epi[0]); e(epi[1]); stamp(15)
    for q in (1,2,3): e(f"s_xor_b32 s8, s3, {q}"); e("s_mul_i32 s8, s8, 18432"); e(f"v_lshl_add_u32 v{15+q}, v1, 4, s8")
    e("s_waitcnt vmcnt(2)")
    lab("GG_L"); e(f"v_xor_b32 v20, s{NON}, v{G+1}")
    for j in range(1,8): e(f"v_xor_b32 v21, s{NON}, v{G+2*j+1}"); e("v_or_b32 v20, v20, v21")
    e("v_cmp_ne_u32 vcc, 0, v20"); e("s_nop 4"); e("s_cbranch_vccz GG_OK")
    for x in epi[2:6]: e(x)
    e("s_waitcnt vmcnt(0)"); e("s_branch GG_L"); lab("GG_OK"); stamp(12)
    for j in range(8): e(f"v_and_b32 v{G+2*j+1}, 0xffff0000, v{G+2*j}"); e(f"v_lshlrev_b32 v{G+2*j}, 16, v{G+2*j}")
    PK[0]=1
    wr=[f"ds_write_b128 v4, {V(ACC+16*q+4*k,4)} offset:{q*4096+1024*k}" for q in (1,3,2) for k in range(4)]
    e(f"v_lshlrev_b32 v{DA}, 16, v{DA}"); e(f"v_lshlrev_b32 v{DB}, 16, v{DB}")
    for j in range(8):
        x=X+2*j; g=G+2*j
        for _ in range(2):
            if wr: e(wr.pop(0))
        if j==6:
            e("s_waitcnt lgkmcnt(0)"); e("s_barrier")
            for q in (1,2,3):
                for k in range(4): e(f"ds_read_b128 {V(ACC+16*q+4*k,4)}, v{15+q} offset:{q*4096+1024*k}")
        e(f"v_lshlrev_b32 v{x}, 16, v{x}"); e(f"v_lshlrev_b32 v{x+1}, 16, v{x+1}")
        e(f"v_pk_mul_f32 v[20:21], {V(x)}, {V(DA)} op_sel:[0,0] op_sel_hi:[1,0]"); e(f"v_pk_mul_f32 v[22:23], {V(x)}, {V(DA)} op_sel:[0,1] op_sel_hi:[1,1]")
        e("v_cvt_pk_bf16_f32 v20, v20, v21"); e("v_cvt_pk_bf16_f32 v22, v22, v23")
        e(f"v_and_b32 v{33+2*j}, 0xffff0000, v20"); e(f"v_lshlrev_b32 v{32+2*j}, 16, v20")
        e(f"v_and_b32 v23, 0xffff0000, v22"); e(f"v_lshlrev_b32 v22, 16, v22"); e(f"v_pk_add_f32 {V(ACC+2*j)}, {V(ACC+2*j)}, v[22:23]")
        e(f"v_sub_f32 v20, 1.0, v{g}"); e(f"v_sub_f32 v21, 1.0, v{g+1}"); e(f"v_cvt_pk_bf16_f32 v20, v20, v21")
        e(f"v_and_b32 v{x+1}, 0xffff0000, v20"); e(f"v_lshlrev_b32 v{x}, 16, v20")
    e("s_waitcnt vmcnt(0) lgkmcnt(0)")
    for j in range(8):
        a=ACC+2*j
        e(f"v_lshlrev_b32 v22, 16, v{Y+j}"); e(f"v_and_b32 v23, 0xffff0000, v{Y+j}")
        e(f"v_pk_add_f32 {V(a)}, {V(a)}, {V(a+16)}"); e(f"v_pk_add_f32 v[20:21], {V(32+2*j)}, v[22:23]"); e("v_cvt_pk_bf16_f32 v20, v20, v21")
        e(f"v_pk_add_f32 {V(a+32)}, {V(a+32)}, {V(a+48)}"); e("v_and_b32 v21, 0xffff0000, v20"); e("v_lshlrev_b32 v20, 16, v20")
        e(f"v_pk_mul_f32 v[20:21], v[20:21], {V(G+2*j)}"); e(f"v_pk_add_f32 {V(a)}, {V(a)}, {V(a+32)}"); e("v_cvt_pk_bf16_f32 v20, v20, v21")
        e(f"v_and_b32 v21, 0xffff0000, v20"); e(f"v_lshlrev_b32 v20, 16, v20")
        e(f"v_pk_fma_f32 {V(a)}, {V(a)}, {V(X+2*j)}, v[20:21]")
        for r in range(2): e(f"buffer_store_dword v{a+r}, v{246+par(j)}, {S(80)}, s{24+j} offen offset:{2048*r}")
    stamp_end(13,8<<20)
    e("s_endpgm")
```

```python
from common import *
UB=19360; BS=2208; TB=8704
def gen():
    lab("K1_CONV"); STV[0]=255; e("s_setprio 3")
    e("s_and_b32 s4, s2, 7"); e("s_lshl_b32 s4, s4, 5"); e("s_bfe_u32 s8, s2, 0x50003"); e("s_add_u32 s4, s4, s8")
    e("s_lshr_b32 s6, s3, 1"); e("s_and_b32 s7, s3, 1"); e("s_lshl_b32 s5, s4, 1"); e("s_add_u32 s5, s5, s6")
    e("s_lshl_b32 s8, s4, 9"); e("v_lshl_add_u32 v6, v0, 1, s8")
    e("s_lshl_b32 s8, s5, 1"); e("v_mov_b32 v7, s8")
    e("s_and_b32 s8, s4, 31"); e("s_lshl_b32 s8, s8, 16"); e("s_lshr_b32 s9, s4, 5"); e("s_lshl_b32 s9, s9, 7"); e("s_add_u32 s13, s8, s9")
    e("v_lshrrev_b32 v9, 5, v0"); e("v_lshlrev_b32 v8, 11, v3"); e("v_lshl_add_u32 v8, v9, 4, v8")
    e("s_waitcnt lgkmcnt(0)")
    srd(88,52,256)
    e("s_or_b32 s8, s2, s3"); e("s_cmp_lg_u32 s8, 0"); e("s_cbranch_scc1 G_NW")
    e(f"s_or_b32 s{NON}, s96, 1"); flag_store(14,88,"0")
    lab("G_NW")
    if os.environ.get("EXP")=="1": stamp_end(10,8<<20); e("s_endpgm")
    for i in range(4): srd(56+4*i,18+2*i,131072); e(f"buffer_load_ushort v{20+i}, v6, {S(56+4*i)}, 0 offen")
    srd(72,26,1024); e(f"buffer_load_ushort v24, v7, {S(72)}, 0 offen")
    srd(76,16,2097152)
    e(f"buffer_load_dwordx4 v[200:203], v8, {S(76)}, s13 offen"); e(f"buffer_load_dwordx4 v[204:207], v8, {S(76)}, s13 offen offset:1024")
    srd(80,40,524288); srd(84,42,524288); srd(72,48,1024); srd(92,54,WSSZ)
    e("s_lshr_b32 s8, s4, 4"); e("s_lshl_b32 s8, s8, 15"); e("s_and_b32 s9, s4, 15"); e("s_lshl_b32 s9, s9, 6"); e("s_add_u32 s8, s8, s9")
    e("s_lshl_b32 s9, s3, 4"); e("s_add_u32 s8, s8, s9")
    e("v_lshlrev_b32 v14, 10, v3"); e("v_lshl_add_u32 v14, v2, 3, v14")
    e(f"buffer_load_dwordx2 v[208:209], v14, {S(80)}, s8 offen"); e(f"buffer_load_dwordx2 v[210:211], v14, {S(84)}, s8 offen")
    e("s_lshl_b32 s8, s4, 13"); e("s_lshl_b32 s9, s3, 11"); e("s_add_u32 s8, s8, s9"); e("v_lshlrev_b32 v14, 4, v1")
    e(f"buffer_load_dwordx4 v[212:215], v14, {S(76)}, s8 offen"); e(f"buffer_load_dwordx4 v[216:219], v14, {S(76)}, s8 offen offset:1024")
    e(f"buffer_load_dwordx4 v[220:223], v14, {S(72)}, 0 offen")
    nonce_issue(25,88); e("s_setprio 0")
    e("s_andn2_b32 s8, s4, 31"); e("s_lshl_b32 s8, s8, 14"); e("s_and_b32 s9, s4, 31"); e("s_lshl_b32 s9, s9, 9"); e("s_add_u32 s13, s8, s9"); e(f"s_add_u32 s13, s13, {WS_XT}")
    e("v_lshlrev_b32 v8, 16, v9"); e("v_lshl_add_u32 v8, v3, 4, v8")
    e("s_mov_b32 s14, 0x05040100"); e("s_mov_b32 s15, 0x07060302")
    for c in range(4):
        e(f"v_add_u32 v14, {c}, v0"); e("v_lshrrev_b32 v15, 6, v14"); e("v_and_b32 v14, 63, v14")
        e(f"v_mul_u32_u24 v15, {BS}, v15"); e(f"v_lshl_add_u32 v{10+c}, v14, 2, v15")
    e("v_lshrrev_b32 v14, 2, v3"); e("v_and_b32 v15, 3, v3"); e("v_and_b32 v16, 3, v14")
    e("v_mul_u32_u24 v14, 272, v14"); e("v_lshl_add_u32 v14, v15, 2, v14"); e("v_cmp_lt_u32 vcc, v15, v16")
    for i in range(4): e(f"v_mov_b32 v{224+i}, 0")
    e("s_and_saveexec_b64 s[10:11], vcc"); e(f"ds_write_b32 v14, v224 offset:{UB+7*BS}"); e("s_mov_b64 exec, s[10:11]")
    e(f"s_mul_i32 s12, s3, {TB}"); e("v_lshl_add_u32 v16, v1, 2, s12")
    e("v_mul_u32_u24 v17, 272, v3"); e("v_lshl_add_u32 v17, v2, 4, v17"); e("v_add_u32 v17, s12, v17")
    stamp(1); e("s_waitcnt vmcnt(8)"); stamp(2); e("s_mov_b32 m0, s12")
    for r in range(20,25): e(f"v_lshlrev_b32 v{r}, 16, v{r}")
    expbf(24,24); expbf(20,20)
    e("v_mul_f32 v20, v20, v24"); e("v_mul_f32 v21, v21, v24")
    e(f"v_mul_f32 v20, {fl(-1.4426950408889634)}, v20"); e(f"v_mul_f32 v21, {INV2PI}, v21")
    e("v_add_f32 v24, v24, v24"); e("v_mul_f32 v22, v22, v24"); e("v_mul_f32 v23, v23, v24")
    Z8,Z16,Z1,Z2,Z4,Z256=26,28,30,32,34,36
    cexp(Z8,20,21,fl(8),18); cexp(Z16,20,21,fl(16),18)
    e("s_waitcnt vmcnt(0)"); nonce_check(25,88,"C")
    for k in range(4):
        t=228+4*k
        e(f"v_perm_b32 v{t}, v{204+k}, v{200+k}, s14"); e(f"v_mov_b32 v{t+1}, s{NON}"); e(f"v_perm_b32 v{t+2}, v{204+k}, v{200+k}, s15"); e(f"v_mov_b32 v{t+3}, s{NON}")
        e(f"buffer_store_dwordx4 {V(t,4)}, v8, {S(92)}, s13 offen sc1"); e("s_add_u32 s13, s13, 16384")
    e("v_perm_b32 v244, v210, v208, s14"); e("v_perm_b32 v245, v210, v208, s15"); e("v_perm_b32 v246, v211, v209, s14"); e("v_perm_b32 v247, v211, v209, s15")
    e("s_lshl_b32 s8, s4, 12"); e(f"s_add_u32 s8, s8, {WS_C}"); e("v_lshlrev_b32 v9, 4, v0")
    e(f"buffer_store_dwordx4 v[244:247], v9, {S(92)}, s8 offen sc1"); stamp(7)
    tmp=[60]
    def put(row,r,neg):
        t=tmp[0]; tmp[0]=60+(t-59)%4
        e(f"v_cvt_pk_bf16_f32 v{t}, v{r}, {'-' if neg else ''}v{r+1}"); e(f"ds_write_addtid_b32 v{t} offset:{272*row}")
    e("v_mov_b32 v60, 0x3f80"); e("ds_write_addtid_b32 v60"); tmp[0]=61
    put(1,Z8,0); put(2,Z16,0)
    ev,od=Z16,Z8
    for c in range(3,32):
        if c%2: n=40+((c>>1)%2)*2; cmul(n,od,Z16); od=n
        else:   n=44+((c>>1)%2)*2; cmul(n,ev,Z16); ev=n
        put(c,n,0)
    GF=128; RF=160
    for s in range(8): e(f"ds_read_b128 {V(GF+4*s,4)}, v17 offset:{32*s}")
    e("s_lshl_b32 s98, s4, 14"); e(f"s_add_u32 s98, s98, {WS_XT}"); e("v_add_u32 v8, 8192, v9")
    def xtl():
        for q in range(4): e(f"buffer_load_dwordx4 {V(228+4*q,4)}, v{9 if q<2 else 8}, {S(92)}, s98 offen offset:{(q&1)*4096-(q&1)*16 if 0 else 0} sc1") if not (q&1) else e(f"buffer_load_dwordx4 {V(228+4*q,4)}, v{9 if q<2 else 8}, {S(92)}, s97 offen sc1")
    e("s_add_u32 s97, s98, 4096")
    cexp(Z1,20,21,"1.0",18); cexp(Z2,20,21,"2.0",18); cexp(Z4,20,21,"4.0",18); cexp(Z256,20,21,fl(256),18)
    def row(h,reg): return (reg&3)+4*h+8*(reg>>2)
    for k in range(1,8): cmul(64+2*k, 22 if k==1 else 62+2*k, Z256)
    e("s_waitcnt lgkmcnt(0)"); stamp(11)
    put(row(0,0),22,1); cmul(40,22,Z1); put(row(0,1),40,1)
    ev,od=22,40
    for j in range(2,8):
        if j%2: n=42 if od!=42 else 40; cmul(n,od,Z2); od=n
        else:   n=44 if ev!=44 else 46; cmul(n,ev,Z2); ev=n
        put(row(0,j),n,1)
    put(row(0,8),66,1); cmul(40,66,Z2); put(row(0,9),40,1); cmul(42,66,Z4); put(row(0,10),42,1)
    cmul(44,40,Z4); put(row(0,11),44,1); cmul(46,66,Z8); put(row(0,12),46,1)
    for (h,r0,b) in ((0,13,68),(1,0,70)):
        put(row(h,r0),b,1); cmul(40,b,Z4); put(row(h,r0+1),40,1); cmul(42,b,Z8); put(row(h,r0+2),42,1)
    for k in range(4):
        put(row(1,3+2*k),72+2*k,1); cmul(44+2*(k%2),72+2*k,Z8); put(row(1,4+2*k),44+2*(k%2),1)
    for s in range(8): e(f"ds_read_b128 {V(RF+4*s,4)}, v17 offset:{32*s}")
    D=64; stamp(3)
    for s in range(8):
        e(f"s_waitcnt lgkmcnt({7-s})")
        e(f"v_mfma_f32_32x32x16_bf16 {V(D,16)}, {V(RF+4*s,4)}, {V(GF+4*s,4)}, {'0' if s==0 else V(D,16)}")
    e("s_lshl_b32 s8, s4, 9"); e("s_lshl_b32 s9, s3, 7"); e("s_add_u32 s8, s8, s9"); e(f"s_add_u32 s8, s8, {WS_FC}")
    e("s_waitcnt vmcnt(0)"); flag_store(18,92,"s8")
    xtl(); stamp(12)
    def uput(q):
        for c in range(4):
            e(f"ds_write_b32 v{10+c}, v{228+4*q} offset:{UB+(7+4*q)*BS+272*c}"); e(f"ds_write_b32 v{10+c}, v{230+4*q} offset:{UB+(7+4*q)*BS+272*(4+c)}")
    e("v_lshl_add_u32 v16, v1, 4, s12"); e("s_xor_b32 s13, s3, 1"); e(f"s_mul_i32 s13, s13, {TB}"); e("v_lshl_add_u32 v17, v1, 4, s13")
    e("s_nop 7")
    for k in range(4): e(f"ds_write_b128 v16, {V(D+4*k,4)} offset:{1024*k}")
    e("s_waitcnt lgkmcnt(0)"); e("s_barrier")
    for k in range(4): e(f"ds_read_b128 {V(80+4*k,4)}, v17 offset:{1024*k}")
    e("s_waitcnt lgkmcnt(0)"); e("s_barrier")
    for k in range(8): e(f"v_pk_add_f32 {V(D+2*k)}, {V(D+2*k)}, {V(80+2*k)}")
    e("v_lshlrev_b32 v16, 4, v0")
    for k in range(3): e(f"ds_write_b128 v16, v[224:227] offset:{UB+4096*k}")
    e("v_min_u32 v16, 3152, v16"); e(f"ds_write_b128 v16, v[224:227] offset:{UB+12288}")
    e("s_mul_i32 s12, s6, 8960"); e("s_mul_i32 s13, s7, 4480"); e("s_add_u32 s13, s13, s12")
    e("v_and_b32 v16, 15, v1"); e("v_lshl_add_u32 v16, v16, 4, s13"); e("ds_write_b128 v16, v[224:227] offset:4096")
    e("v_sub_u32 v16, 31, v3"); e("v_lshl_add_u32 v16, v16, 4, s13")
    e("v_and_b32 v17, 1, v1"); e("v_cmp_eq_u32 vcc, 1, v17"); e("s_nop 1")
    def chunk(kb,el,r):
        for q in range(4):
            hi=6+r-2*q
            e(f"v_cvt_pk_bf16_f32 v{80+q}, v{el[hi]}, v{el[hi-1]}")
        e(f"ds_write_b128 v16, v[80:83] offset:{512*(7-kb)}"); e("s_nop 0")
    def els(lst,prev):
        d={i:x for i,x in enumerate(lst)}; d[-1]=prev; return d
    def r2(b): return els([b,b,b,b+1,b+1,b+1,b+2,b+2],b)
    for k in range(4): e(f"v_cndmask_b32 v{84+k}, v{D+3+2*k}, v{D+4+2*k}, vcc")
    e("s_cmp_eq_u32 s7, 0"); e("s_cbranch_scc1 C_R0")
    for r in (1,0):
        if r==0: lab("C_R0")
        e("s_mov_b32 exec_hi, 0")
        chunk(0,els([D+i for i in range(8)],224),r)
        chunk(1,els([D+8,D+8,D+9,D+10,D+10,D+10,D+11,D+12],D+8),r)
        chunk(2,r2(D+13),r)
        if r==0:
            e(f"v_cvt_pk_bf16_f32 v80, v{D+7}, v{D+7}"); e(f"ds_write_b16 v16, v80 offset:{512*7-2}")
        e("s_mov_b32 exec_hi, -1"); e("s_mov_b32 exec_lo, 0")
        chunk(3,r2(D),r)
        for k in range(4):
            a=D+3+2*k; chunk(4+k,els([a,a,a,a,84+k,a+1,a+1,a+1],a),r)
        e("s_mov_b32 exec_lo, -1")
        if r==1: e("s_branch C_RD")
    lab("C_RD")
    stamp(4)
    for rr in range(2):
        for i in range(4):
            x=212+4*rr+i
            e(f"v_lshlrev_b32 v84, 16, v{x}"); e(f"v_and_b32 v85, 0xffff0000, v{x}")
            e(f"v_lshlrev_b32 v86, 16, v{220+i}"); e(f"v_and_b32 v87, 0xffff0000, v{220+i}")
            e("v_pk_mul_f32 v[84:85], v[84:85], v[86:87]"); e("v_cvt_pk_bf16_f32 v84, v84, v85")
            e("v_and_b32 v85, 0xffff0000, v84"); e("v_lshlrev_b32 v84, 16, v84")
            if i==0: e(f"v_add_f32 v{88+rr}, v84, v85")
            else: e(f"v_add_f32 v{88+rr}, v{88+rr}, v84"); e(f"v_add_f32 v{88+rr}, v{88+rr}, v85")
    for md in ("row_shr:1","row_shr:2","row_shr:4","row_shr:8","row_bcast:15 row_mask:0xa","row_bcast:31 row_mask:0xc"):
        e("s_nop 0")
        for rr in range(2): e(f"v_add_f32_dpp v{88+rr}, v{88+rr}, v{88+rr} {md}")
    for rr in range(2):
        bfr(88+rr,88+rr); e(f"v_mul_f32 v{88+rr}, {fl(-1.4426950408889634)}, v{88+rr}"); e(f"v_exp_f32 v{88+rr}, v{88+rr}"); e("s_nop 0")
        e(f"v_add_f32 v{88+rr}, 1.0, v{88+rr}"); e(f"v_rcp_f32 v{88+rr}, v{88+rr}"); e("s_nop 0")
    e("v_cvt_pk_bf16_f32 v88, v88, v89"); e(f"v_mov_b32 v89, s{NON}")
    e("s_lshr_b32 s8, s4, 3"); e("s_lshr_b32 s9, s4, 1"); e("s_xor_b32 s8, s8, s9"); e("s_lshr_b32 s9, s4, 2"); e("s_xor_b32 s8, s8, s9"); e("s_and_b32 s8, s8, 1"); e("s_lshl_b32 s8, s8, 6")
    e("s_and_b32 s9, s4, 7"); e("s_lshl_b32 s9, s9, 3"); e("s_add_u32 s8, s8, s9")
    e("s_lshr_b32 s9, s4, 4"); e("s_lshl_b32 s9, s9, 9"); e("s_add_u32 s8, s8, s9")
    e("s_sub_u32 s9, 3, s3"); e("s_lshl_b32 s9, s9, 7"); e("s_add_u32 s8, s8, s9"); e(f"s_add_u32 s8, s8, {WS_G}")
    e("v_cmp_eq_u32 vcc, 63, v1"); e("v_mov_b32 v18, 0x7ffffff0"); e("s_nop 0"); e("v_cndmask_b32 v18, v18, v224, vcc")
    e(f"buffer_store_dwordx2 v[88:89], v18, {S(92)}, s8 offen sc1")
    stamp(5); e("s_waitcnt vmcnt(1)")
    lab("C_XL")
    e(f"v_xor_b32 v18, s{NON}, v229")
    for r in range(231,244,2): e(f"v_xor_b32 v19, s{NON}, v{r}"); e("v_or_b32 v18, v18, v19")
    e("v_cmp_ne_u32 vcc, 0, v18"); e("s_nop 4"); e("s_cbranch_vccz C_XOK")
    e("s_sleep 8"); xtl(); e("s_waitcnt vmcnt(0)"); e("s_branch C_XL")
    lab("C_XOK"); stamp(6)
    for q in range(4): uput(q)
    e("v_lshl_or_b32 v18, v5, 3, v4"); e("v_sub_u32 v18, v2, v18"); e("v_add_u32 v18, 15, v18"); e("v_and_b32 v19, 1, v1"); e("v_mul_u32_u24 v19, 4480, v19")
    e("v_lshl_add_u32 v20, v18, 4, v19"); e("s_xor_b32 s9, s7, 1"); e("s_lshl_b32 s8, s9, 10"); e("s_add_u32 s8, s8, s12"); e("v_add_u32 v20, s8, v20")
    e("v_and_b32 v18, 3, v1"); e("v_bfe_u32 v19, v1, 3, 1"); e("v_lshl_or_b32 v22, v19, 2, v18")
    e("v_bfe_u32 v19, v1, 4, 1"); e("v_lshl_or_b32 v23, v5, 1, v19")
    e(f"v_mul_u32_u24 v18, {BS}, v22"); e("v_mul_u32_u24 v19, 272, v23"); e("v_add_u32 v18, v18, v19"); e("v_lshl_add_u32 v21, v2, 4, v18")
    e(f"s_mul_i32 s8, s9, {4*BS}"); e("s_mul_i32 s9, s6, 1088"); e("s_add_u32 s8, s8, s9"); e("v_add_u32 v21, s8, v21")
    e("s_waitcnt lgkmcnt(0)"); e("s_barrier")
    stamp(8); T0,T1,F=64,80,96; NB=3
    def rd(s):
        f=F+16*(s%NB)
        ob=UB+(3-(s>>3))*BS+224-32*(s&7)
        e(f"ds_read_b128 {V(f,4)}, v20 offset:{3040-32*s}"); e(f"ds_read_b128 {V(f+4,4)}, v21 offset:{ob}")
        e(f"ds_read_b128 {V(f+8,4)}, v21 offset:{ob+8*BS}"); e(f"ds_read_b128 {V(f+12,4)}, v20 offset:{992-32*s}")
    rd(0); rd(1)
    for s in range(32):
        f=F+16*(s%NB)
        if s+2<32: rd(s+2); e("s_waitcnt lgkmcnt(8)")
        else: e(f"s_waitcnt lgkmcnt({4 if s==30 else 0})")
        e(f"v_mfma_f32_32x32x16_bf16 {V(T0,16)}, {V(f,4)}, {V(f+4,4)}, {'0' if s==0 else V(T0,16)}")
        e(f"v_mfma_f32_32x32x16_bf16 {V(T1,16)}, {V(f,4)}, {V(f+8,4)}, {'0' if s==0 else V(T1,16)}")
        e(f"v_mfma_f32_32x32x16_bf16 {V(T1,16)}, {V(f+12,4)}, {V(f+4,4)}, {V(T1,16)}")
    stamp(9); e("s_barrier")
    e("s_lshl_b32 s8, s3, 12"); e("v_lshl_add_u32 v16, v1, 4, s8"); e("v_xor_b32 v17, 4096, v16")
    e("s_lshl_b32 s8, s5, 12"); e("s_lshl_b32 s9, s7, 11"); e("s_add_u32 s8, s8, s9"); e(f"s_add_u32 s8, s8, {WS_Y}")
    e("v_lshl_or_b32 v18, v22, 2, v23"); e("v_lshl_or_b32 v18, v18, 1, v2"); e("v_lshlrev_b32 v18, 4, v18")
    e("s_nop 3"); e("s_cmp_eq_u32 s7, 0"); e("s_cbranch_scc1 C_F0")
    for ww in (1,0):
        if ww==0: lab("C_F0")
        keep,send=(T1,T0) if ww else (T0,T1)
        for k in range(4): e(f"ds_write_b128 v16, {V(send+4*k,4)} offset:{1024*k}")
        e("s_waitcnt lgkmcnt(0)"); e("s_barrier")
        for k in range(4): e(f"ds_read_b128 {V(96+4*k,4)}, v17 offset:{1024*k}")
        e("s_waitcnt lgkmcnt(0)")
        for k in range(8):
            e(f"v_pk_add_f32 {V(96+2*k)}, {V(96+2*k)}, {V(keep+2*k)}"); e(f"v_cvt_pk_bf16_f32 v{112+k}, v{96+2*k}, v{97+2*k}")
        e(f"buffer_store_dwordx4 v[112:115], v18, {S(92)}, s8 offen sc1"); e(f"buffer_store_dwordx4 v[116:119], v18, {S(92)}, s8 offen offset:1024 sc1")
        e("s_lshl_b32 s8, s5, 7"); e(f"s_add_u32 s8, s8, {WS_FY+65536*ww}"); e("s_waitcnt vmcnt(0)"); flag_store(18,92,"s8")
        stamp_end(10,8<<20); e("s_endpgm")
```

```python
from common import *
def gen():
    lab("K1_GEMM"); stamp_mv(63)
    e("s_and_b32 s6, s2, 7"); e("s_bfe_u32 s7, s2, 0x50003")
    e("s_lshr_b32 s4, s6, 1"); e("s_lshl_b32 s4, s4, 2"); e("s_and_b32 s8, s7, 3"); e("s_add_u32 s4, s4, s8")
    e("s_and_b32 s5, s6, 1"); e("s_lshl_b32 s5, s5, 3"); e("s_lshr_b32 s8, s7, 2"); e("s_add_u32 s5, s5, s8")
    e("s_bfe_u32 s88, s7, 0x10002"); e("s_and_b32 s89, s6, 1"); e("s_lshl_b32 s89, s89, 2"); e("s_lshr_b32 s9, s7, 3"); e("s_add_u32 s89, s89, s9")
    e("s_and_b32 s90, s7, 3"); e("s_lshl_b32 s90, s90, 1"); e("s_add_u32 s90, s90, s8"); e("s_lshl_b32 s90, s90, 7")
    e("v_lshrrev_b32 v6, 3, v1"); e("v_and_b32 v7, 7, v1")
    e("v_bfe_u32 v8, v6, 1, 1")
    e("v_xor_b32 v7, v7, v8")
    e("v_and_b32 v9, 1, v6"); e("v_lshl_or_b32 v9, v9, 3, v8")
    e("v_lshrrev_b32 v10, 2, v6"); e("v_lshl_or_b32 v9, v10, 4, v9")
    e("s_lshl_b32 s8, s3, 5"); e("v_add_u32 v9, s8, v9")
    for q in range(4):
        e(f"v_xor_b32 v10, {2*q}, v7"); e(f"v_lshlrev_b32 v10, 4, v10")
        e(f"v_add_u32 v11, {2*q}, v9"); e(f"v_lshl_add_u32 v{12+q}, v11, 10, v10")
    e("s_and_b32 s8, s3, 1"); e("s_lshl_b32 s9, s8, 2"); e("s_lshl_b32 s8, s8, 4")
    for qq in range(2):
        e(f"v_xor_b32 v10, s9, v7"); e(f"v_xor_b32 v10, {2*qq}, v10"); e("v_lshlrev_b32 v10, 4, v10")
        e(f"v_add3_u32 v11, s8, v6, {8*qq}"); e(f"v_lshl_add_u32 v{16+qq}, v11, 10, v10")
    e("s_waitcnt lgkmcnt(0)")
    e("s_lshl_b32 s8, s4, 17"); srd(56,16,131072,"s8")
    e("s_cmp_lt_u32 s3, 2"); e("s_cselect_b32 s10, s36, s38"); e("s_cselect_b32 s11, s37, s39")
    e("s_lshl_b32 s8, s5, 15"); srd(60,10,32768,"s8")
    srd(64,32,1024); srd(68,34,1024); srd(72,44,1024)
    e("s_lshl_b32 s8, s5, 13"); e(f"s_add_u32 s8, s8, {WS_E}"); srd(76,54,8192,"s8")
    srd(80,52,256)
    e("s_lshl_b32 s8, s4, 18"); srd(84,54,262144,"s8")
    e("s_lshl_b32 s8, s5, 6"); e("v_lshl_add_u32 v10, v3, 1, s8")
    e(f"buffer_load_ushort v20, v10, {S(64)}, 0 offen"); e(f"buffer_load_ushort v21, v10, {S(68)}, 0 offen"); e(f"buffer_load_ushort v22, v10, {S(72)}, 0 offen")
    e("s_lshl_b32 s8, s4, 9"); e("v_lshl_add_u32 v18, v3, 4, s8"); e("v_mov_b32 v10, 0x7ffffff0")
    e("v_cmp_lt_u32 vcc, 223, v0"); e("v_mov_b32 v24, 0"); e("v_mov_b32 v25, 0"); e("v_cndmask_b32 v18, v10, v18, vcc")
    e("v_mov_b32 v26, 0"); e("v_mov_b32 v27, 0")
    srd(92,54,WSSZ)
    e("s_lshl_b32 s13, s3, 12"); e("s_lshl_b32 s14, s3, 11"); e("s_add_u32 s14, s14, 16384")
    def dma(st):
        b=(st%3)*24576
        e(f"s_add_u32 s15, s90, {128*st}"); e("s_and_b32 s15, s15, 1023")
        for q in range(4):
            e(f"s_add_u32 m0, s13, {b+1024*q}"); e("s_nop 0"); e(f"buffer_load_dwordx4 v{12+q}, {S(56)}, s15 offen lds")
        for q in range(2):
            e(f"s_add_u32 m0, s14, {b+1024*q}"); e("s_nop 0"); e(f"buffer_load_dwordx4 v{16+q}, {S(60)}, s15 offen lds")
    for st in range(3): dma(st)
    e("s_setprio 3")
    for s in range(4):
        e(f"v_or_b32 v10, {2*s}, v2"); e("v_xor_b32 v10, v10, v4"); e("v_lshlrev_b32 v10, 4, v10")
        e(f"v_lshl_add_u32 v{28+s}, v3, 7, v10"); e(f"v_add_u32 v{32+s}, s13, v{28+s}"); e(f"v_add_u32 v{28+s}, 16384, v{28+s}")
    stamp(1); e("s_waitcnt vmcnt(18)"); stamp(2)
    for r in (20,21,22): e(f"v_lshlrev_b32 v{r}, 16, v{r}")
    expbf(22,22)
    e("v_mul_f32 v36, v22, v20"); e("v_mul_f32 v37, v22, v21")
    e(f"v_mul_f32 v36, {LOG2E}, v36"); e(f"v_mul_f32 v37, {INV2PI}, v37")
    cexp(40,36,37,"1.0",38); cexp(42,36,37,fl(8),38);
    e("s_lshl_b32 s8, s3, 2"); e("s_sub_u32 s8, 15, s8"); e("v_sub_u32 v10, s8, v2"); e("v_lshlrev_b32 v10, 7, v10"); e("v_cvt_f32_u32 v10, v10")
    cexp(44,36,37,"v10",38); e(f"v_add_f32 v10, {fl(-256)}, v10"); cexp(46,36,37,"v10",38)
    e("v_lshrrev_b32 v10, 5, v0"); e("v_lshlrev_b32 v10, 4, v10"); e("v_cvt_f32_u32 v10, v10")
    cexp(48,36,37,"v10",38)
    e("v_mul_f32 v38, v20, v20"); e("v_fmac_f32 v38, v21, v21"); e("v_rcp_f32 v38, v38")
    e("v_add_f32 v52, -1.0, v40"); e("v_mov_b32 v53, v41"); e("v_add_f32 v38, v38, v38")
    e("v_mul_f32 v54, v20, v38"); e("v_mul_f32 v55, v21, v38"); e("v_sub_f32 v55, 0, v55")
    cmul(50,52,54)
    RE=64; IM=80; FR=96
    e("v_bfe_u32 v19, v1, 2, 1"); e("v_and_b32 v10, 3, v1"); e("v_lshlrev_b32 v10, 7, v10"); e("v_lshl_add_u32 v19, v19, 11, v10")
    e("v_bfe_u32 v57, v1, 4, 1"); e("v_and_b32 v10, 15, v1"); e("v_lshlrev_b32 v10, 7, v10"); e("v_lshl_add_u32 v57, v57, 13, v10")
    e("s_lshl_b32 s91, s89, 14"); e("s_lshl_b32 s8, s3, 11"); e("s_add_u32 s91, s91, s8"); e(f"s_add_u32 s91, s91, {WS_FC}")
    e("s_lshl_b32 s8, s89, 17"); e(f"s_add_u32 s8, s8, {WS_C}"); srd(64,54,131072,"s8")
    e("s_lshl_b32 s8, s3, 14"); e("v_lshl_add_u32 v6, v1, 4, s8"); e("s_and_b32 s8, s3, 1"); e("s_lshl_b32 s8, s8, 16"); e("v_add_u32 v6, s8, v6"); e("v_xor_b32 v7, 0x10000, v6")
    def CR(ks,nt): return (192 if ks<8 else 128-64)+8*ks+4*nt
    def cld(k0):
        for ks in range(k0,k0+8):
            if ks%4==0: e(f"s_mov_b32 s15, {1024*ks}")
            for nt in range(2): e(f"buffer_load_dwordx4 {V(CR(ks,nt),4)}, v{6+nt}, {S(64)}, s15 offen offset:{1024*(ks%4)} sc1")
    def rds(k,s):
        b=(k%3)*24576; f=FR+48*(k%2)+12*s
        return [f"ds_read_b128 {V(f,4)}, v{32+s} offset:{b}", f"ds_read_b128 {V(f+4,4)}, v{28+s} offset:{b}", f"ds_read_b128 {V(f+8,4)}, v{28+s} offset:{b+4096}"]
    e("s_waitcnt vmcnt(12)"); e("s_barrier"); stamp(3)
    for s in range(4):
        for x in rds(0,s): e(x)
    waits=[6,6,6,7,6,6,0,None]
    for k in range(8):
        if k<7: e(f"s_waitcnt vmcnt({waits[k]}) lgkmcnt(0)"); e("s_barrier")
        else: e("s_waitcnt lgkmcnt(0)")
        if k in (2,6): stamp({2:4,6:5}[k])
        fill=[]
        if k<7:
            for s in range(4): fill.append(rds(k+1,s))
        n0=len(L)
        if k+3<8: dma(k+3)
        dl=L[n0:]; del L[n0:]
        dg=[dl[:5]]+[dl[5+3*i:8+3*i] for i in range(5)] if dl else []
        i=0
        for s in range(4):
            for (acc,o) in ((RE,4),(IM,8)):
                f=FR+48*(k%2)+12*s
                c="0" if (k==0 and s==0) else V(acc,16)
                e(f"v_mfma_f32_32x32x16_bf16 {V(acc,16)}, {V(f,4)}, {V(f+o,4)}, {c}")
                if i<len(dg): L.extend(dg[i])
                if i>=1 and i-1<len(fill):
                    for x in fill[i-1]: e(x)
                i+=1
        if k==2: nonce_issue(22,80)
        if k==4: nonce_check(22,80,"G")
    if os.environ.get("EXP") in ("1","2"): stamp_end(6,8<<20); e("s_endpgm")
    EB=49152
    e("s_nop 1"); e("v_lshlrev_b32 v56, 4, v0"); e(f"ds_write_b128 v56, v[24:27] offset:{EB}")
    e("v_lshrrev_b32 v56, 5, v0"); e("v_lshlrev_b32 v56, 9, v56"); e("v_lshl_add_u32 v56, v3, 3, v56")
    e("s_nop 7")
    def step(dr,di,pr,pi,t):
        e(f"v_pk_fma_f32 {V(dr)}, {V(40)}, {V(pr)}, {V(RE+2*t)} op_sel:[0,0,0] op_sel_hi:[0,1,1]")
        e(f"v_pk_fma_f32 {V(di)}, {V(40)}, {V(pi)}, {V(IM+2*t)} op_sel:[0,0,0] op_sel_hi:[0,1,1]")
        e(f"v_pk_fma_f32 {V(dr)}, {V(40)}, {V(pi)}, {V(dr)} op_sel:[1,0,0] op_sel_hi:[1,1,1] neg_lo:[1,0,0] neg_hi:[1,0,0]")
        e(f"v_pk_fma_f32 {V(di)}, {V(40)}, {V(pr)}, {V(di)} op_sel:[1,0,0] op_sel_hi:[1,1,1]")
    pr,pi=RE,IM
    for t in range(1,8):
        dr,di=(96,98) if t%2 else (100,102)
        step(dr,di,pr,pi,t); pr,pi=dr,di
    e("v_mov_b32 v58, v96"); e("v_mov_b32 v59, v98"); e("v_mov_b32 v60, v97"); e("v_mov_b32 v61, v99")
    e(f"ds_write_b64 v56, v[58:59] offset:{EB+4096}"); e(f"ds_write_b64 v56, v[60:61] offset:{EB+4096+256}")
    e("s_waitcnt lgkmcnt(0)"); e("s_barrier")
    for j in range(14): e(f"ds_read_b64 {V(96+2*j)}, v56 offset:{EB+512+256*j}")
    for j in range(1,14):
        e(f"s_waitcnt lgkmcnt({13-j})"); cfma(96+2*j,42,96+2*j-2,96+2*j)
    cfma(58,42,122,58); cfma(60,42,58,60)
    e("v_mov_b32 v24, v60"); e(f"v_mov_b32 v25, s{NON}"); e("v_mov_b32 v26, v61"); e(f"v_mov_b32 v27, s{NON}")
    e(f"buffer_store_dwordx4 v[24:27], v18, {S(76)}, 0 offen sc1")
    stamp(6)
    e("s_lshl_b32 s8, s4, 9"); e("s_lshl_b32 s9, s3, 11"); e("s_add_u32 s8, s8, s9"); e("s_sub_u32 s8, s8, 8192"); e("v_lshl_add_u32 v12, v1, 4, s8"); e("v_add_u32 v13, 1024, v12")
    G=128
    def gl():
        for j in range(2): e(f"buffer_load_dwordx4 {V(G+4*j,4)}, v{12+j}, {S(76)}, 0 offen sc1")
    for t in range(8):
        e(f"v_pk_mul_f32 {V(96)}, {V(50)}, {V(IM+2*t)} op_sel:[1,0] op_sel_hi:[1,1]")
        e(f"v_pk_mul_f32 {V(IM+2*t)}, {V(50)}, {V(IM+2*t)} op_sel:[0,0] op_sel_hi:[0,1]")
        e(f"v_pk_fma_f32 {V(IM+2*t)}, {V(50)}, {V(RE+2*t)}, {V(IM+2*t)} op_sel:[1,0,0] op_sel_hi:[1,1,1]")
        e(f"v_pk_fma_f32 {V(RE+2*t)}, {V(50)}, {V(RE+2*t)}, {V(96)} op_sel:[0,0,0] op_sel_hi:[0,1,1] neg_lo:[0,0,1] neg_hi:[0,0,1]")
    e("v_lshlrev_b32 v14, 3, v0"); e("v_lshlrev_b32 v15, 3, v3")
    gl()
    lab("G_POLL")
    e("s_waitcnt vmcnt(0)")
    e("v_mov_b32 v10, 0")
    for j in range(2):
        e(f"v_ashrrev_i32 v11, 31, v{12+j}"); e(f"v_xor_b32 v{G+4*j+1}, s{NON}, v{G+4*j+1}"); e(f"v_xor_b32 v{G+4*j+3}, s{NON}, v{G+4*j+3}")
        e(f"v_or_b32 v{G+4*j+1}, v{G+4*j+1}, v{G+4*j+3}"); e(f"v_bfi_b32 v11, v11, 0, v{G+4*j+1}"); e("v_or_b32 v10, v10, v11")
    e("v_cmp_ne_u32 vcc, 0, v10"); e("s_nop 4"); e("s_cbranch_vccz G_POLL_OK")
    gl(); e("s_branch G_POLL")
    lab("G_POLL_OK"); stamp(8)
    for j in range(2): e(f"v_mov_b32 v{G+4*j+1}, v{G+4*j+2}")
    cmul(96,44,G); cfma(96,46,G+4,96)
    e(f"ds_write_b64 v14, v[96:97] offset:{EB+8192}"); e("s_waitcnt lgkmcnt(0)"); e("s_barrier"); stamp(7)
    e(f"buffer_load_dword v23, v57, {S(92)}, s91 offen sc1")
    for j in range(8): e(f"ds_read_b64 {V(G+2*j)}, v15 offset:{EB+8192+256*j}")
    e("s_waitcnt lgkmcnt(0)")
    for st in (8,4,2):
        for j in range(0,st,2): e(f"v_pk_add_f32 {V(G+j)}, {V(G+j)}, {V(G+j+st)}")
    HX=G
    cmul(98,48,HX)
    e(f"v_pk_add_f32 {V(122)}, {V(122)}, {V(98)}")
    cfma(58,42,98,58)
    cmul(100,50,122); cmul(102,50,58)
    e("v_mov_b32 v96, v100"); e("v_mov_b32 v97, v102"); e("v_mov_b32 v98, v101"); e("v_mov_b32 v99, v103")
    e("v_lshrrev_b32 v56, 5, v0"); e("v_mul_u32_u24 v56, 2304, v56"); e("v_lshl_add_u32 v56, v3, 2, v56")
    pr,pi=96,98
    for t in range(8):
        dr,di=(104,106) if t%2==0 else (108,110)
        step(dr,di,pr,pi,t); pr,pi=dr,di
        e(f"v_cvt_pk_bf16_f32 v{112+2*(t%2)}, v{dr}, -v{di}"); e(f"v_cvt_pk_bf16_f32 v{113+2*(t%2)}, v{dr+1}, -v{di+1}")
        e(f"ds_write_b32 v56, v{112+2*(t%2)} offset:{144*t}"); e(f"ds_write_b32 v56, v{113+2*(t%2)} offset:{144*(t+8)}")
    e("v_lshl_or_b32 v10, v5, 3, v4"); e("v_and_b32 v11, 1, v1"); e("v_lshl_add_u32 v10, v10, 3, v11")
    e("s_lshl_b32 s8, s3, 1"); e("s_sub_u32 s8, 6, s8"); e("v_add_u32 v10, s8, v10")
    e("v_mul_u32_u24 v10, 144, v10"); e("v_lshl_add_u32 v10, v2, 4, v10")
    e("s_lshl_b32 s8, s3, 16"); e("s_lshl_b32 s9, s5, 12"); e("s_add_u32 s8, s8, s9"); e("v_lshlrev_b32 v11, 4, v1")
    e("s_waitcnt lgkmcnt(0)"); e("s_barrier")
    for k in range(4): e(f"ds_read_b128 {V(96+4*k,4)}, v10 offset:{32*k}")
    e("s_waitcnt vmcnt(0)"); flag_check(23,57,92,"s91","GC")
    for k in range(4):
        e(f"s_waitcnt lgkmcnt({3-k})"); e(f"buffer_store_dwordx4 {V(96+4*k,4)}, v11, {S(84)}, s8 offen offset:{1024*k} sc1")
    cld(0)
    e("s_lshl_b32 s8, s4, 13"); e(f"s_add_u32 s8, s8, {WS_FH}"); e("s_lshl_b32 s9, s3, 11"); e("s_add_u32 s9, s9, s8"); e("s_lshl_b32 s10, s5, 7"); e("s_add_u32 s9, s9, s10")
    e("s_lshl_b32 s10, s88, 12"); e("s_add_u32 s91, s8, s10"); e("s_lshl_b32 s10, s3, 9"); e("s_add_u32 s91, s91, s10")
    e("v_mov_b32 v9, v19")
    stamp(9)
    e("s_waitcnt vmcnt(16)"); stamp(14); flag_store(10,92,"s9"); cld(8); e("s_barrier")
    e(f"buffer_load_dword v8, v9, {S(92)}, s91 offen sc1")
    import k2; k2.gen(CR)
```

```python
L=[]
import re
PK=[0]
def e(s):
    if PK[0] or not s.startswith("v_pk_"): L.append("    "+s); return
    op=s.split()[0][5:8]; regs=[int(x) for x in re.findall(r"v\[(\d+):\d+\]",s)]; n=len(regs)-1
    def md(nm,df):
        m=re.search(nm+r":\[([\d,]+)\]",s); return [int(x) for x in m.group(1).split(",")] if m else [df]*n
    for h,(sel,neg) in enumerate(((md("op_sel",0),md("neg_lo",0)),(md("op_sel_hi",1),md("neg_hi",0)))):
        d=regs[0]+h; src=[regs[1+i]+sel[i] for i in range(n)]
        if h: assert regs[0] not in src, s
        if op=="fma" and src[2]==d and not any(neg): L.append(f"    v_fmac_f32 v{d}, v{src[0]}, v{src[1]}")
        else: L.append(f"    v_{op}_f32 v{d}, "+", ".join(("-" if neg[i] else "")+f"v{src[i]}" for i in range(n)))
def lab(s): L.append(s+":")
def cm(s): L.append("    ; "+s)
WS_H=0; WS_C=4<<20; WS_Y=5<<20; WS_G=7<<20; WS_E=(7<<20)+65536
WS_FH=(7<<20)+0x40000; WS_FY=WS_FH+0x20000; WS_FC=WS_FH+0x40000; WS_XT=10<<20; WSSZ=0x1000000
NON=99
LOG2E="0x3fb8aa3b"; INV2PI="0x3e22f983"
def srd(d, base, nbytes, off=None):
    if off is None:
        e(f"s_mov_b32 s{d}, s{base}"); e(f"s_mov_b32 s{d+1}, s{base+1}")
    else:
        e(f"s_add_u32 s{d}, s{base}, {off}"); e(f"s_addc_u32 s{d+1}, s{base+1}, 0")
    e(f"s_mov_b32 s{d+2}, {nbytes}"); e(f"s_mov_b32 s{d+3}, 0x20000")
def S(d): return f"s[{d}:{d+3}]"
def V(a,n=2): return f"v[{a}:{a+n-1}]"
def A(a,n=4): return f"a[{a}:{a+n-1}]"
def cmul(d,a,b):
    e(f"v_pk_mul_f32 {V(d)}, {V(a)}, {V(b)} op_sel:[0,0] op_sel_hi:[0,1]")
    e(f"v_pk_fma_f32 {V(d)}, {V(a)}, {V(b)}, {V(d)} op_sel:[1,1,0] op_sel_hi:[1,0,1] neg_lo:[0,1,0]")
def cfma(d,a,b,c):
    e(f"v_pk_fma_f32 {V(d)}, {V(a)}, {V(b)}, {V(c)} op_sel:[0,0,0] op_sel_hi:[0,1,1]")
    e(f"v_pk_fma_f32 {V(d)}, {V(a)}, {V(b)}, {V(d)} op_sel:[1,1,0] op_sel_hi:[1,0,1] neg_lo:[0,1,0]")
def cexp(d,a2,brev,k,t):
    e(f"v_mul_f32 v{t}, {k}, v{a2}"); e(f"v_mul_f32 v{t+1}, {k}, v{brev}")
    e(f"v_exp_f32 v{t}, v{t}"); e(f"v_fract_f32 v{t+1}, v{t+1}")
    e(f"v_cos_f32 v{d}, v{t+1}"); e(f"v_sin_f32 v{d+1}, v{t+1}"); e("s_nop 0")
    e(f"v_mul_f32 v{d}, v{t}, v{d}"); e(f"v_mul_f32 v{d+1}, v{t}, v{d+1}")
def bfr(d,s):
    e(f"v_cvt_pk_bf16_f32 v{d}, v{s}, v{s}"); e(f"v_and_b32 v{d}, 0xffff0000, v{d}")
def expbf(d,s):
    e(f"v_mul_f32 v{d}, {LOG2E}, v{s}"); e(f"v_exp_f32 v{d}, v{d}"); e("s_nop 0"); bfr(d,d)
def fl(x):
    import struct
    return "0x%08x"%struct.unpack("<I",struct.pack("<f",x))[0]
def load_ptrs():
    e("s_load_dwordx16 s[16:31], s[0:1], 0"); e("s_load_dwordx16 s[32:47], s[0:1], 64"); e("s_load_dwordx8 s[48:55], s[0:1], 128")
def lane_bits():
    e("v_lshrrev_b32 v4, 6, v0"); e("v_and_b32 v1, 63, v0"); e("v_readfirstlane_b32 s3, v4")
    e("v_lshrrev_b32 v2, 5, v1"); e("v_and_b32 v3, 31, v1")
    e("v_bfe_u32 v4, v1, 1, 1"); e("v_bfe_u32 v5, v1, 3, 2"); e("v_lshl_or_b32 v4, v5, 1, v4")
    e("v_lshrrev_b32 v5, 2, v1"); e("v_lshrrev_b32 v6, 3, v1"); e("v_xor_b32 v5, v5, v6")
    e("v_lshrrev_b32 v6, 4, v1"); e("v_xor_b32 v5, v5, v6"); e("v_and_b32 v5, 1, v5")
import os
STAMP=os.environ.get("STAMP") in ("1","2")
STV=[255]
def stamp_mv(n):
    if STAMP: e(f"v_mov_b32 v{n}, v{STV[0]}")
    STV[0]=n
def stamp(i):
    if STAMP:
        e("s_memrealtime s[100:101]"); e("s_waitcnt lgkmcnt(0)"); e(f"v_writelane_b32 v{STV[0]}, s100, {i}")
def stamp_end(i,base):
    if STAMP:
        e("s_waitcnt vmcnt(0)"); stamp(i); e(f"v_mov_b32 v255, v{STV[0]}")
        if os.environ.get("STAMP")=="2":
            srd(92,52,64); e("v_readlane_b32 s100, v255, 0"); e("v_and_b32 v254, 63, v0"); e("v_subrev_u32 v255, s100, v255"); e("v_lshlrev_b32 v254, 2, v254")
            e("s_lshl_b32 s100, s2, 2"); e("s_add_u32 s100, s100, s3"); e(f"s_cmp_eq_u32 s100, {os.environ['SW']}"); e("s_cselect_b32 s100, 0, 0x100000"); e("s_mov_b64 exec, 0xfffe")
            e("buffer_store_dword v255, v254, s[92:95], s100 offen"); return
        srd(92,54,0x1000000)
        e("s_lshl_b32 s100, s2, 2"); e("s_add_u32 s100, s100, s3"); e("s_lshl_b32 s100, s100, 6"); e(f"s_add_u32 s100, s100, {base}")
        e("v_and_b32 v254, 63, v0"); e("v_lshlrev_b32 v254, 2, v254"); e("s_mov_b64 exec, 0xffff")
        e("buffer_store_dword v255, v254, s[92:95], s100 offen")

def nonce_issue(v,sr):
    e(f"v_mov_b32 v{v}, 0"); e(f"buffer_load_dword v{v}, v{v}, {S(sr)}, 0 offen sc1")
def nonce_check(v,sr,nm):
    lab(nm+"_NL"); e(f"v_readfirstlane_b32 s{NON}, v{v}"); e(f"s_cmp_lg_u32 s{NON}, 0"); e(f"s_cbranch_scc1 {nm}_NOK")
    e("s_sleep 2"); nonce_issue(v,sr); e("s_waitcnt vmcnt(0)"); e(f"s_branch {nm}_NL"); lab(nm+"_NOK")
def flag_check(v,va,sr,so,nm):
    lab(nm+"_FL"); e(f"v_cmp_ne_u32 vcc, s{NON}, v{v}"); e("s_nop 4"); e(f"s_cbranch_vccz {nm}_FOK")
    e(f"buffer_load_dword v{v}, v{va}, {S(sr)}, {so} offen sc1"); e("s_waitcnt vmcnt(0)"); e(f"s_branch {nm}_FL"); lab(nm+"_FOK")
def flag_store(vt,sr,so):
    e(f"v_mov_b32 v{vt}, s{NON}"); e(f"v_lshlrev_b32 v{vt+1}, 24, v1"); e(f"buffer_store_dword v{vt}, v{vt+1}, {S(sr)}, {so} offen sc1")
```

```python
from common import *
UB=19360; BS=2208; TB=8704
def gen():
    lab("K1_CONV"); STV[0]=255; e("s_setprio 3")
    e("s_and_b32 s4, s2, 7"); e("s_lshl_b32 s4, s4, 5"); e("s_bfe_u32 s8, s2, 0x50003"); e("s_add_u32 s4, s4, s8")
    e("s_lshr_b32 s6, s3, 1"); e("s_and_b32 s7, s3, 1"); e("s_lshl_b32 s5, s4, 1"); e("s_add_u32 s5, s5, s6")
    e("s_lshl_b32 s8, s4, 9"); e("v_lshl_add_u32 v6, v0, 1, s8")
    e("s_lshl_b32 s8, s5, 1"); e("v_mov_b32 v7, s8")
    e("s_and_b32 s8, s4, 31"); e("s_lshl_b32 s8, s8, 16"); e("s_lshr_b32 s9, s4, 5"); e("s_lshl_b32 s9, s9, 7"); e("s_add_u32 s13, s8, s9")
    e("v_lshrrev_b32 v9, 5, v0"); e("v_lshlrev_b32 v8, 11, v3"); e("v_lshl_add_u32 v8, v9, 4, v8")
    e("s_waitcnt lgkmcnt(0)")
    srd(88,52,256)
    e("s_or_b32 s8, s2, s3"); e("s_cmp_lg_u32 s8, 0"); e("s_cbranch_scc1 G_NW")
    e(f"s_or_b32 s{NON}, s96, 1"); flag_store(14,88,"0")
    lab("G_NW")
    if os.environ.get("EXP")=="1": stamp_end(10,8<<20); e("s_endpgm")
    for i in range(4): srd(56+4*i,18+2*i,131072); e(f"buffer_load_ushort v{20+i}, v6, {S(56+4*i)}, 0 offen")
    srd(72,26,1024); e(f"buffer_load_ushort v24, v7, {S(72)}, 0 offen")
    srd(76,16,2097152)
    e(f"buffer_load_dwordx4 v[200:203], v8, {S(76)}, s13 offen"); e(f"buffer_load_dwordx4 v[204:207], v8, {S(76)}, s13 offen offset:1024")
    srd(80,40,524288); srd(84,42,524288); srd(72,48,1024); srd(92,54,WSSZ)
    e("s_lshr_b32 s8, s4, 4"); e("s_lshl_b32 s8, s8, 15"); e("s_and_b32 s9, s4, 15"); e("s_lshl_b32 s9, s9, 6"); e("s_add_u32 s8, s8, s9")
    e("s_lshl_b32 s9, s3, 4"); e("s_add_u32 s8, s8, s9")
    e("v_lshlrev_b32 v14, 10, v3"); e("v_lshl_add_u32 v14, v2, 3, v14")
    e(f"buffer_load_dwordx2 v[208:209], v14, {S(80)}, s8 offen"); e(f"buffer_load_dwordx2 v[210:211], v14, {S(84)}, s8 offen")
    e("s_lshl_b32 s8, s4, 13"); e("s_lshl_b32 s9, s3, 11"); e("s_add_u32 s8, s8, s9"); e("v_lshlrev_b32 v14, 4, v1")
    e(f"buffer_load_dwordx4 v[212:215], v14, {S(76)}, s8 offen"); e(f"buffer_load_dwordx4 v[216:219], v14, {S(76)}, s8 offen offset:1024")
    e(f"buffer_load_dwordx4 v[220:223], v14, {S(72)}, 0 offen")
    nonce_issue(25,88); e("s_setprio 0")
    e("s_andn2_b32 s8, s4, 31"); e("s_lshl_b32 s8, s8, 14"); e("s_and_b32 s9, s4, 31"); e("s_lshl_b32 s9, s9, 9"); e("s_add_u32 s13, s8, s9"); e(f"s_add_u32 s13, s13, {WS_XT}")
    e("v_lshlrev_b32 v8, 16, v9"); e("v_lshl_add_u32 v8, v3, 4, v8")
    e("s_mov_b32 s14, 0x05040100"); e("s_mov_b32 s15, 0x07060302")
    for c in range(4):
        e(f"v_add_u32 v14, {c}, v0"); e("v_lshrrev_b32 v15, 6, v14"); e("v_and_b32 v14, 63, v14")
        e(f"v_mul_u32_u24 v15, {BS}, v15"); e(f"v_lshl_add_u32 v{10+c}, v14, 2, v15")
    e("v_lshrrev_b32 v14, 2, v3"); e("v_and_b32 v15, 3, v3"); e("v_and_b32 v16, 3, v14")
    e("v_mul_u32_u24 v14, 272, v14"); e("v_lshl_add_u32 v14, v15, 2, v14"); e("v_cmp_lt_u32 vcc, v15, v16")
    for i in range(4): e(f"v_mov_b32 v{224+i}, 0")
    e("s_and_saveexec_b64 s[10:11], vcc"); e(f"ds_write_b32 v14, v224 offset:{UB+7*BS}"); e("s_mov_b64 exec, s[10:11]")
    e(f"s_mul_i32 s12, s3, {TB}"); e("v_lshl_add_u32 v16, v1, 2, s12")
    e("v_mul_u32_u24 v17, 272, v3"); e("v_lshl_add_u32 v17, v2, 4, v17"); e("v_add_u32 v17, s12, v17")
    stamp(1); e("s_waitcnt vmcnt(8)"); stamp(2); e("s_mov_b32 m0, s12")
    for r in range(20,25): e(f"v_lshlrev_b32 v{r}, 16, v{r}")
    expbf(24,24); expbf(20,20)
    e("v_mul_f32 v20, v20, v24"); e("v_mul_f32 v21, v21, v24")
    e(f"v_mul_f32 v20, {fl(-1.4426950408889634)}, v20"); e(f"v_mul_f32 v21, {INV2PI}, v21")
    e("v_add_f32 v24, v24, v24"); e("v_mul_f32 v22, v22, v24"); e("v_mul_f32 v23, v23, v24")
    Z8,Z16,Z1,Z2,Z4,Z256=26,28,30,32,34,36
    cexp(Z8,20,21,fl(8),18); cexp(Z16,20,21,fl(16),18)
    e("s_waitcnt vmcnt(0)"); nonce_check(25,88,"C")
    for k in range(4):
        t=228+4*k
        e(f"v_perm_b32 v{t}, v{204+k}, v{200+k}, s14"); e(f"v_mov_b32 v{t+1}, s{NON}"); e(f"v_perm_b32 v{t+2}, v{204+k}, v{200+k}, s15"); e(f"v_mov_b32 v{t+3}, s{NON}")
        e(f"buffer_store_dwordx4 {V(t,4)}, v8, {S(92)}, s13 offen sc1"); e("s_add_u32 s13, s13, 16384")
    e("v_perm_b32 v244, v210, v208, s14"); e("v_perm_b32 v245, v210, v208, s15"); e("v_perm_b32 v246, v211, v209, s14"); e("v_perm_b32 v247, v211, v209, s15")
    e("s_lshl_b32 s8, s4, 12"); e(f"s_add_u32 s8, s8, {WS_C}"); e("v_lshlrev_b32 v9, 4, v0")
    e(f"buffer_store_dwordx4 v[244:247], v9, {S(92)}, s8 offen sc1"); stamp(7)
    tmp=[60]
    def put(row,r,neg):
        t=tmp[0]; tmp[0]=60+(t-59)%4
        e(f"v_cvt_pk_bf16_f32 v{t}, v{r}, {'-' if neg else ''}v{r+1}"); e(f"ds_write_addtid_b32 v{t} offset:{272*row}")
    e("v_mov_b32 v60, 0x3f80"); e("ds_write_addtid_b32 v60"); tmp[0]=61
    put(1,Z8,0); put(2,Z16,0)
    ev,od=Z16,Z8
    for c in range(3,32):
        if c%2: n=40+((c>>1)%2)*2; cmul(n,od,Z16); od=n
        else:   n=44+((c>>1)%2)*2; cmul(n,ev,Z16); ev=n
        put(c,n,0)
    GF=128; RF=160
    for s in range(8): e(f"ds_read_b128 {V(GF+4*s,4)}, v17 offset:{32*s}")
    e("s_lshl_b32 s98, s4, 14"); e(f"s_add_u32 s98, s98, {WS_XT}"); e("v_add_u32 v8, 8192, v9")
    def xtl():
        for q in range(4): e(f"buffer_load_dwordx4 {V(228+4*q,4)}, v{9 if q<2 else 8}, {S(92)}, s98 offen offset:{(q&1)*4096-(q&1)*16 if 0 else 0} sc1") if not (q&1) else e(f"buffer_load_dwordx4 {V(228+4*q,4)}, v{9 if q<2 else 8}, {S(92)}, s97 offen sc1")
    e("s_add_u32 s97, s98, 4096")
    cexp(Z1,20,21,"1.0",18); cexp(Z2,20,21,"2.0",18); cexp(Z4,20,21,"4.0",18); cexp(Z256,20,21,fl(256),18)
    def row(h,reg): return (reg&3)+4*h+8*(reg>>2)
    for k in range(1,8): cmul(64+2*k, 22 if k==1 else 62+2*k, Z256)
    e("s_waitcnt lgkmcnt(0)"); stamp(11)
    put(row(0,0),22,1); cmul(40,22,Z1); put(row(0,1),40,1)
    ev,od=22,40
    for j in range(2,8):
        if j%2: n=42 if od!=42 else 40; cmul(n,od,Z2); od=n
        else:   n=44 if ev!=44 else 46; cmul(n,ev,Z2); ev=n
        put(row(0,j),n,1)
    put(row(0,8),66,1); cmul(40,66,Z2); put(row(0,9),40,1); cmul(42,66,Z4); put(row(0,10),42,1)
    cmul(44,40,Z4); put(row(0,11),44,1); cmul(46,66,Z8); put(row(0,12),46,1)
    for (h,r0,b) in ((0,13,68),(1,0,70)):
        put(row(h,r0),b,1); cmul(40,b,Z4); put(row(h,r0+1),40,1); cmul(42,b,Z8); put(row(h,r0+2),42,1)
    for k in range(4):
        put(row(1,3+2*k),72+2*k,1); cmul(44+2*(k%2),72+2*k,Z8); put(row(1,4+2*k),44+2*(k%2),1)
    for s in range(8): e(f"ds_read_b128 {V(RF+4*s,4)}, v17 offset:{32*s}")
    D=64; stamp(3)
    for s in range(8):
        e(f"s_waitcnt lgkmcnt({7-s})")
        e(f"v_mfma_f32_32x32x16_bf16 {V(D,16)}, {V(RF+4*s,4)}, {V(GF+4*s,4)}, {'0' if s==0 else V(D,16)}")
    e("s_lshl_b32 s8, s4, 9"); e("s_lshl_b32 s9, s3, 7"); e("s_add_u32 s8, s8, s9"); e(f"s_add_u32 s8, s8, {WS_FC}")
    e("s_waitcnt vmcnt(0)"); flag_store(18,92,"s8")
    xtl(); stamp(12)
    def uput(q):
        for c in range(4):
            e(f"ds_write_b32 v{10+c}, v{228+4*q} offset:{UB+(7+4*q)*BS+272*c}"); e(f"ds_write_b32 v{10+c}, v{230+4*q} offset:{UB+(7+4*q)*BS+272*(4+c)}")
    e("v_lshl_add_u32 v16, v1, 4, s12"); e("s_xor_b32 s13, s3, 1"); e(f"s_mul_i32 s13, s13, {TB}"); e("v_lshl_add_u32 v17, v1, 4, s13")
    e("s_nop 7")
    for k in range(4): e(f"ds_write_b128 v16, {V(D+4*k,4)} offset:{1024*k}")
    e("s_waitcnt lgkmcnt(0)"); e("s_barrier")
    for k in range(4): e(f"ds_read_b128 {V(80+4*k,4)}, v17 offset:{1024*k}")
    e("s_waitcnt lgkmcnt(0)"); e("s_barrier")
    for k in range(8): e(f"v_pk_add_f32 {V(D+2*k)}, {V(D+2*k)}, {V(80+2*k)}")
    e("v_lshlrev_b32 v16, 4, v0")
    for k in range(3): e(f"ds_write_b128 v16, v[224:227] offset:{UB+4096*k}")
    e("v_min_u32 v16, 3152, v16"); e(f"ds_write_b128 v16, v[224:227] offset:{UB+12288}")
    e("s_mul_i32 s12, s6, 8960"); e("s_mul_i32 s13, s7, 4480"); e("s_add_u32 s13, s13, s12")
    e("v_and_b32 v16, 15, v1"); e("v_lshl_add_u32 v16, v16, 4, s13"); e("ds_write_b128 v16, v[224:227] offset:4096")
    e("v_sub_u32 v16, 31, v3"); e("v_lshl_add_u32 v16, v16, 4, s13")
    e("v_and_b32 v17, 1, v1"); e("v_cmp_eq_u32 vcc, 1, v17"); e("s_nop 1")
    def chunk(kb,el,r):
        for q in range(4):
            hi=6+r-2*q
            e(f"v_cvt_pk_bf16_f32 v{80+q}, v{el[hi]}, v{el[hi-1]}")
        e(f"ds_write_b128 v16, v[80:83] offset:{512*(7-kb)}"); e("s_nop 0")
    def els(lst,prev):
        d={i:x for i,x in enumerate(lst)}; d[-1]=prev; return d
    def r2(b): return els([b,b,b,b+1,b+1,b+1,b+2,b+2],b)
    for k in range(4): e(f"v_cndmask_b32 v{84+k}, v{D+3+2*k}, v{D+4+2*k}, vcc")
    e("s_cmp_eq_u32 s7, 0"); e("s_cbranch_scc1 C_R0")
    for r in (1,0):
        if r==0: lab("C_R0")
        e("s_mov_b32 exec_hi, 0")
        chunk(0,els([D+i for i in range(8)],224),r)
        chunk(1,els([D+8,D+8,D+9,D+10,D+10,D+10,D+11,D+12],D+8),r)
        chunk(2,r2(D+13),r)
        if r==0:
            e(f"v_cvt_pk_bf16_f32 v80, v{D+7}, v{D+7}"); e(f"ds_write_b16 v16, v80 offset:{512*7-2}")
        e("s_mov_b32 exec_hi, -1"); e("s_mov_b32 exec_lo, 0")
        chunk(3,r2(D),r)
        for k in range(4):
            a=D+3+2*k; chunk(4+k,els([a,a,a,a,84+k,a+1,a+1,a+1],a),r)
        e("s_mov_b32 exec_lo, -1")
        if r==1: e("s_branch C_RD")
    lab("C_RD")
    stamp(4)
    stamp(5); e("s_waitcnt vmcnt(0)")
    lab("C_XL")
    e(f"v_xor_b32 v18, s{NON}, v229")
    for r in range(231,244,2): e(f"v_xor_b32 v19, s{NON}, v{r}"); e("v_or_b32 v18, v18, v19")
    e("v_cmp_ne_u32 vcc, 0, v18"); e("s_nop 4"); e("s_cbranch_vccz C_XOK")
    e("s_sleep 8"); xtl(); e("s_waitcnt vmcnt(0)"); e("s_branch C_XL")
    lab("C_XOK"); stamp(6)
    for q in range(4): uput(q)
    e("v_lshl_or_b32 v18, v5, 3, v4"); e("v_sub_u32 v18, v2, v18"); e("v_add_u32 v18, 15, v18"); e("v_and_b32 v19, 1, v1"); e("v_mul_u32_u24 v19, 4480, v19")
    e("v_lshl_add_u32 v20, v18, 4, v19"); e("s_xor_b32 s9, s7, 1"); e("s_lshl_b32 s8, s9, 10"); e("s_add_u32 s8, s8, s12"); e("v_add_u32 v20, s8, v20")
    e("v_and_b32 v18, 3, v1"); e("v_bfe_u32 v19, v1, 3, 1"); e("v_lshl_or_b32 v22, v19, 2, v18")
    e("v_bfe_u32 v19, v1, 4, 1"); e("v_lshl_or_b32 v23, v5, 1, v19")
    e(f"v_mul_u32_u24 v18, {BS}, v22"); e("v_mul_u32_u24 v19, 272, v23"); e("v_add_u32 v18, v18, v19"); e("v_lshl_add_u32 v21, v2, 4, v18")
    e(f"s_mul_i32 s8, s9, {4*BS}"); e("s_mul_i32 s9, s6, 1088"); e("s_add_u32 s8, s8, s9"); e("v_add_u32 v21, s8, v21")
    e("s_waitcnt lgkmcnt(0)"); e("s_barrier")
    stamp(8); T0,T1,F=64,80,96; NB=3
    def rd(s):
        if s>=32: return []
        f=F+16*(s%NB); ob=UB+(3-(s>>3))*BS+224-32*(s&7)
        return [f"ds_read_b128 {V(f,4)}, v20 offset:{3040-32*s}", f"ds_read_b128 {V(f+4,4)}, v21 offset:{ob}",
                f"ds_read_b128 {V(f+8,4)}, v21 offset:{ob+8*BS}", f"ds_read_b128 {V(f+12,4)}, v20 offset:{992-32*s}"]
    for x in rd(0)+rd(1): e(x)
    for s in range(32):
        f=F+16*(s%NB); r=rd(s+2)
        e(f"s_waitcnt lgkmcnt({4 if s<31 else 0})")
        e(f"v_mfma_f32_32x32x16_bf16 {V(T0,16)}, {V(f,4)}, {V(f+4,4)}, {'0' if s==0 else V(T0,16)}")
        for x in r[:2]: e(x)
        e(f"v_mfma_f32_32x32x16_bf16 {V(T1,16)}, {V(f,4)}, {V(f+8,4)}, {'0' if s==0 else V(T1,16)}")
        for x in r[2:3]: e(x)
        e(f"v_mfma_f32_32x32x16_bf16 {V(T1,16)}, {V(f+12,4)}, {V(f+4,4)}, {V(T1,16)}")
        for x in r[3:]: e(x)
    stamp(9); e("s_barrier")
    e("s_lshl_b32 s8, s3, 12"); e("v_lshl_add_u32 v16, v1, 4, s8"); e("v_xor_b32 v17, 4096, v16")
    e("s_lshl_b32 s8, s5, 12"); e("s_lshl_b32 s9, s7, 11"); e("s_add_u32 s8, s8, s9"); e(f"s_add_u32 s8, s8, {WS_Y}")
    e("v_lshl_or_b32 v18, v22, 2, v23"); e("v_lshl_or_b32 v18, v18, 1, v2"); e("v_lshlrev_b32 v18, 4, v18")
    e("s_nop 3"); e("s_cmp_eq_u32 s7, 0"); e("s_cbranch_scc1 C_F0")
    for ww in (1,0):
        if ww==0: lab("C_F0")
        keep,send=(T1,T0) if ww else (T0,T1)
        for k in range(4): e(f"ds_write_b128 v16, {V(send+4*k,4)} offset:{1024*k}")
        e("s_waitcnt lgkmcnt(0)"); e("s_barrier")
        for k in range(4): e(f"ds_read_b128 {V(96+4*k,4)}, v17 offset:{1024*k}")
        e("s_waitcnt lgkmcnt(0)")
        for k in range(8):
            e(f"v_pk_add_f32 {V(96+2*k)}, {V(96+2*k)}, {V(keep+2*k)}"); e(f"v_cvt_pk_bf16_f32 v{112+k}, v{96+2*k}, v{97+2*k}")
        e(f"buffer_store_dwordx4 v[112:115], v18, {S(92)}, s8 offen sc1"); e(f"buffer_store_dwordx4 v[116:119], v18, {S(92)}, s8 offen offset:1024 sc1")
        if ww: e("s_branch C_FD")
    lab("C_FD")
    for rr in range(2):
        for i in range(4):
            x=212+4*rr+i
            e(f"v_lshlrev_b32 v84, 16, v{x}"); e(f"v_and_b32 v85, 0xffff0000, v{x}")
            e(f"v_lshlrev_b32 v86, 16, v{220+i}"); e(f"v_and_b32 v87, 0xffff0000, v{220+i}")
            e("v_pk_mul_f32 v[84:85], v[84:85], v[86:87]"); e("v_cvt_pk_bf16_f32 v84, v84, v85")
            e("v_and_b32 v85, 0xffff0000, v84"); e("v_lshlrev_b32 v84, 16, v84")
            if i==0: e(f"v_add_f32 v{88+rr}, v84, v85")
            else: e(f"v_add_f32 v{88+rr}, v{88+rr}, v84"); e(f"v_add_f32 v{88+rr}, v{88+rr}, v85")
    for md in ("row_shr:1","row_shr:2","row_shr:4","row_shr:8","row_bcast:15 row_mask:0xa","row_bcast:31 row_mask:0xc"):
        e("s_nop 0")
        for rr in range(2): e(f"v_add_f32_dpp v{88+rr}, v{88+rr}, v{88+rr} {md}")
    for rr in range(2):
        bfr(88+rr,88+rr); e(f"v_mul_f32 v{88+rr}, {fl(-1.4426950408889634)}, v{88+rr}"); e(f"v_exp_f32 v{88+rr}, v{88+rr}"); e("s_nop 0")
        e(f"v_add_f32 v{88+rr}, 1.0, v{88+rr}"); e(f"v_rcp_f32 v{88+rr}, v{88+rr}"); e("s_nop 0")
    e("v_cvt_pk_bf16_f32 v88, v88, v89"); e(f"v_mov_b32 v89, s{NON}")
    e("s_lshr_b32 s8, s4, 3"); e("s_lshr_b32 s9, s4, 1"); e("s_xor_b32 s8, s8, s9"); e("s_lshr_b32 s9, s4, 2"); e("s_xor_b32 s8, s8, s9"); e("s_and_b32 s8, s8, 1"); e("s_lshl_b32 s8, s8, 6")
    e("s_and_b32 s9, s4, 7"); e("s_lshl_b32 s9, s9, 3"); e("s_add_u32 s8, s8, s9")
    e("s_lshr_b32 s9, s4, 4"); e("s_lshl_b32 s9, s9, 9"); e("s_add_u32 s8, s8, s9")
    e("s_sub_u32 s9, 3, s3"); e("s_lshl_b32 s9, s9, 7"); e("s_add_u32 s8, s8, s9"); e(f"s_add_u32 s8, s8, {WS_G}")
    e("v_cmp_eq_u32 vcc, 63, v1"); e("v_mov_b32 v18, 0x7ffffff0"); e("s_nop 0"); e("v_cndmask_b32 v18, v18, v224, vcc")
    e(f"buffer_store_dwordx2 v[88:89], v18, {S(92)}, s8 offen sc1")
    e("s_lshl_b32 s8, s5, 7"); e("s_lshl_b32 s9, s7, 16"); e("s_add_u32 s8, s8, s9"); e(f"s_add_u32 s8, s8, {WS_FY}"); e("s_waitcnt vmcnt(1)"); flag_store(18,92,"s8")
    stamp_end(10,8<<20); e("s_endpgm")
```

```python
from common import *
def gen():
    lab("K1_GEMM"); stamp_mv(63)
    e("s_and_b32 s6, s2, 7"); e("s_bfe_u32 s7, s2, 0x50003")
    e("s_lshr_b32 s4, s6, 1"); e("s_lshl_b32 s4, s4, 2"); e("s_and_b32 s8, s7, 3"); e("s_add_u32 s4, s4, s8")
    e("s_and_b32 s5, s6, 1"); e("s_lshl_b32 s5, s5, 3"); e("s_lshr_b32 s8, s7, 2"); e("s_add_u32 s5, s5, s8")
    e("s_bfe_u32 s88, s7, 0x10002"); e("s_and_b32 s89, s6, 1"); e("s_lshl_b32 s89, s89, 2"); e("s_lshr_b32 s9, s7, 3"); e("s_add_u32 s89, s89, s9")
    e("s_and_b32 s90, s7, 3"); e("s_lshl_b32 s90, s90, 1"); e("s_add_u32 s90, s90, s8"); e("s_lshl_b32 s90, s90, 7")
    e("v_lshrrev_b32 v6, 3, v1"); e("v_and_b32 v7, 7, v1")
    e("v_bfe_u32 v8, v6, 1, 1")
    e("v_xor_b32 v7, v7, v8")
    e("v_and_b32 v9, 1, v6"); e("v_lshl_or_b32 v9, v9, 3, v8")
    e("v_lshrrev_b32 v10, 2, v6"); e("v_lshl_or_b32 v9, v10, 4, v9")
    e("s_lshl_b32 s8, s3, 5"); e("v_add_u32 v9, s8, v9")
    for q in range(4):
        e(f"v_xor_b32 v10, {2*q}, v7"); e(f"v_lshlrev_b32 v10, 4, v10")
        e(f"v_add_u32 v11, {2*q}, v9"); e(f"v_lshl_add_u32 v{12+q}, v11, 10, v10")
    e("s_and_b32 s8, s3, 1"); e("s_lshl_b32 s9, s8, 2"); e("s_lshl_b32 s8, s8, 4")
    for qq in range(2):
        e(f"v_xor_b32 v10, s9, v7"); e(f"v_xor_b32 v10, {2*qq}, v10"); e("v_lshlrev_b32 v10, 4, v10")
        e(f"v_add3_u32 v11, s8, v6, {8*qq}"); e(f"v_lshl_add_u32 v{16+qq}, v11, 10, v10")
    e("s_waitcnt lgkmcnt(0)")
    if os.environ.get("EXP")=="3": stamp_end(6,8<<20); e("s_endpgm")
    e("s_lshl_b32 s8, s4, 17"); srd(56,16,131072,"s8")
    e("s_cmp_lt_u32 s3, 2"); e("s_cselect_b32 s10, s36, s38"); e("s_cselect_b32 s11, s37, s39")
    e("s_lshl_b32 s8, s5, 15"); srd(60,10,32768,"s8")
    srd(64,32,1024); srd(68,34,1024); srd(72,44,1024)
    e("s_lshl_b32 s8, s5, 13"); e(f"s_add_u32 s8, s8, {WS_E}"); srd(76,54,8192,"s8")
    srd(80,52,256)
    e("s_lshl_b32 s8, s4, 18"); srd(84,54,262144,"s8")
    e("s_lshl_b32 s8, s5, 6"); e("v_lshl_add_u32 v10, v3, 1, s8")
    e(f"buffer_load_ushort v20, v10, {S(64)}, 0 offen"); e(f"buffer_load_ushort v21, v10, {S(68)}, 0 offen"); e(f"buffer_load_ushort v22, v10, {S(72)}, 0 offen")
    e("s_lshl_b32 s8, s4, 9"); e("v_lshl_add_u32 v18, v3, 4, s8"); e("v_mov_b32 v10, 0x7ffffff0")
    e("v_cmp_lt_u32 vcc, 223, v0"); e("v_mov_b32 v24, 0"); e("v_mov_b32 v25, 0"); e("v_cndmask_b32 v18, v10, v18, vcc")
    e("v_mov_b32 v26, 0"); e("v_mov_b32 v27, 0")
    srd(92,54,WSSZ)
    e("s_lshl_b32 s13, s3, 12"); e("s_lshl_b32 s14, s3, 11"); e("s_add_u32 s14, s14, 16384")
    def dma(st):
        b=(st%3)*24576
        e(f"s_add_u32 s15, s90, {128*st}"); e("s_and_b32 s15, s15, 1023")
        for q in range(4):
            e(f"s_add_u32 m0, s13, {b+1024*q}"); e("s_nop 0"); e(f"buffer_load_dwordx4 v{12+q}, {S(56)}, s15 offen lds")
        for q in range(2):
            e(f"s_add_u32 m0, s14, {b+1024*q}"); e("s_nop 0"); e(f"buffer_load_dwordx4 v{16+q}, {S(60)}, s15 offen lds")
    for st in range(2): dma(st)
    e("s_setprio 3")
    for s in range(4):
        e(f"v_or_b32 v10, {2*s}, v2"); e("v_xor_b32 v10, v10, v4"); e("v_lshlrev_b32 v10, 4, v10")
        e(f"v_lshl_add_u32 v{28+s}, v3, 7, v10"); e(f"v_add_u32 v{32+s}, s13, v{28+s}"); e(f"v_add_u32 v{28+s}, 16384, v{28+s}")
    n0=len(L)
    for r in (20,21,22): e(f"v_lshlrev_b32 v{r}, 16, v{r}")
    expbf(22,22)
    e("v_mul_f32 v36, v22, v20"); e("v_mul_f32 v37, v22, v21")
    e(f"v_mul_f32 v36, {LOG2E}, v36"); e(f"v_mul_f32 v37, {INV2PI}, v37")
    cexp(40,36,37,"1.0",38); cexp(42,36,37,fl(8),38); cexp(8,36,37,fl(16),38);
    e("s_lshl_b32 s8, s3, 2"); e("s_sub_u32 s8, 15, s8"); e("v_sub_u32 v10, s8, v2"); e("v_lshlrev_b32 v10, 7, v10"); e("v_cvt_f32_u32 v10, v10")
    cexp(44,36,37,"v10",38); e(f"v_add_f32 v10, {fl(-256)}, v10"); cexp(46,36,37,"v10",38)
    e("v_lshrrev_b32 v10, 5, v0"); e("v_lshlrev_b32 v10, 4, v10"); e("v_cvt_f32_u32 v10, v10")
    cexp(48,36,37,"v10",38)
    e("v_mul_f32 v38, v20, v20"); e("v_fmac_f32 v38, v21, v21"); e("v_rcp_f32 v38, v38")
    e("v_add_f32 v52, -1.0, v40"); e("v_mov_b32 v53, v41"); e("v_add_f32 v38, v38, v38")
    e("v_mul_f32 v54, v20, v38"); e("v_mul_f32 v55, v21, v38"); e("v_sub_f32 v55, 0, v55")
    cmul(50,52,54)
    RE=64; IM=80; FR=96
    e("v_bfe_u32 v19, v1, 2, 1"); e("v_and_b32 v10, 3, v1"); e("v_lshlrev_b32 v10, 7, v10"); e("v_lshl_add_u32 v19, v19, 11, v10")
    e("v_bfe_u32 v57, v1, 4, 1"); e("v_and_b32 v10, 15, v1"); e("v_lshlrev_b32 v10, 7, v10"); e("v_lshl_add_u32 v57, v57, 13, v10")
    e("s_lshl_b32 s91, s89, 14"); e("s_lshl_b32 s8, s3, 11"); e("s_add_u32 s91, s91, s8"); e(f"s_add_u32 s91, s91, {WS_FC}")
    e("s_lshl_b32 s8, s89, 17"); e(f"s_add_u32 s8, s8, {WS_C}"); srd(64,54,131072,"s8")
    e("s_lshl_b32 s8, s3, 14"); e("v_lshl_add_u32 v6, v1, 4, s8"); e("s_and_b32 s8, s3, 1"); e("s_lshl_b32 s8, s8, 16"); e("v_add_u32 v6, s8, v6"); e("v_xor_b32 v7, 0x10000, v6")
    coefs=L[n0:]; del L[n0:]
    def CR(ks,nt): return (192 if ks<8 else 128-64)+8*ks+4*nt
    def cld(k0):
        for ks in range(k0,k0+8):
            if ks%4==0: e(f"s_mov_b32 s15, {1024*ks}")
            for nt in range(2): e(f"buffer_load_dwordx4 {V(CR(ks,nt),4)}, v{6+nt}, {S(64)}, s15 offen offset:{1024*(ks%4)} sc1")
    def rds(k,s):
        b=(k%3)*24576; f=FR+48*(k%2)+12*s
        return [f"ds_read_b128 {V(f,4)}, v{32+s} offset:{b}", f"ds_read_b128 {V(f+4,4)}, v{28+s} offset:{b}", f"ds_read_b128 {V(f+8,4)}, v{28+s} offset:{b+4096}"]
    stamp(1); e("s_waitcnt vmcnt(6)"); e("s_barrier"); stamp(3)
    for s in range(4):
        for x in rds(0,s): e(x)
    dma(2)
    waits=[6,6,6,7,6,6,0,None]
    for k in range(8):
        if k<7: e(f"s_waitcnt vmcnt({waits[k]}) lgkmcnt(0)"); e("s_barrier")
        else: e("s_waitcnt lgkmcnt(0)")
        if k in (2,6): stamp({2:4,6:5}[k])
        fill=[]
        if k<7:
            for s in range(4): fill.append(rds(k+1,s))
        n0=len(L)
        if k+3<8: dma(k+3)
        dl=L[n0:]; del L[n0:]
        dg=[dl[:5]]+[dl[5+3*i:8+3*i] for i in range(5)] if dl else []
        i=0
        for s in range(4):
            for (acc,o) in ((RE,4),(IM,8)):
                f=FR+48*(k%2)+12*s
                c="0" if (k==0 and s==0) else V(acc,16)
                e(f"v_mfma_f32_32x32x16_bf16 {V(acc,16)}, {V(f,4)}, {V(f+o,4)}, {c}")
                if i<len(dg): L.extend(dg[i])
                if i>=1 and i-1<len(fill):
                    for x in fill[i-1]: e(x)
                if k>=5:
                    L.extend(coefs[:6]); del coefs[:6]
                i+=1
        if k==2: nonce_issue(62,80)
        if k==4: nonce_check(62,80,"G")
    assert not coefs, len(coefs)
    if os.environ.get("EXP") in ("1","2"): stamp_end(6,8<<20); e("s_endpgm")
    EB=49152
    e("s_nop 1"); e("v_lshlrev_b32 v56, 4, v0"); e(f"ds_write_b128 v56, v[24:27] offset:{EB}")
    e("v_lshrrev_b32 v56, 5, v0"); e("v_lshlrev_b32 v56, 8, v56"); e("v_lshl_add_u32 v56, v3, 3, v56")
    e("s_nop 7")
    def step(dr,di,pr,pi,t):
        e(f"v_pk_fma_f32 {V(dr)}, {V(40)}, {V(pr)}, {V(RE+2*t)} op_sel:[0,0,0] op_sel_hi:[0,1,1]")
        e(f"v_pk_fma_f32 {V(di)}, {V(40)}, {V(pi)}, {V(IM+2*t)} op_sel:[0,0,0] op_sel_hi:[0,1,1]")
        e(f"v_pk_fma_f32 {V(dr)}, {V(40)}, {V(pi)}, {V(dr)} op_sel:[1,0,0] op_sel_hi:[1,1,1] neg_lo:[1,0,0] neg_hi:[1,0,0]")
        e(f"v_pk_fma_f32 {V(di)}, {V(40)}, {V(pr)}, {V(di)} op_sel:[1,0,0] op_sel_hi:[1,1,1]")
    pr,pi=RE,IM
    for t in range(1,8):
        dr,di=(96,98) if t%2 else (100,102)
        step(dr,di,pr,pi,t); pr,pi=dr,di
    e("v_mov_b32 v58, v96"); e("v_mov_b32 v59, v98"); e("v_mov_b32 v60, v97"); e("v_mov_b32 v61, v99")
    cfma(60,42,58,60)
    e(f"ds_write_b64 v56, v[60:61] offset:{EB+4096}")
    e("s_waitcnt lgkmcnt(0)"); e("s_barrier")
    for j in range(7): e(f"ds_read_b64 {V(110+2*j)}, v56 offset:{EB+4096-7*256+256*j}")
    for j in range(1,7):
        e(f"s_waitcnt lgkmcnt({6-j})"); cfma(110+2*j,8,110+2*j-2,110+2*j)
    cfma(60,8,122,60)
    e("v_mov_b32 v24, v60"); e(f"v_mov_b32 v25, s{NON}"); e("v_mov_b32 v26, v61"); e(f"v_mov_b32 v27, s{NON}")
    e(f"buffer_store_dwordx4 v[24:27], v18, {S(76)}, 0 offen sc1")
    stamp(6); cfma(58,42,122,58)
    e("s_lshl_b32 s8, s4, 9"); e("s_lshl_b32 s9, s3, 11"); e("s_add_u32 s8, s8, s9"); e("s_sub_u32 s8, s8, 8192"); e("v_lshl_add_u32 v12, v1, 4, s8"); e("v_add_u32 v13, 1024, v12")
    G=128
    def gl():
        for j in range(2): e(f"buffer_load_dwordx4 {V(G+4*j,4)}, v{12+j}, {S(76)}, 0 offen sc1")
    for t in range(8):
        e(f"v_pk_mul_f32 {V(96)}, {V(50)}, {V(IM+2*t)} op_sel:[1,0] op_sel_hi:[1,1]")
        e(f"v_pk_mul_f32 {V(IM+2*t)}, {V(50)}, {V(IM+2*t)} op_sel:[0,0] op_sel_hi:[0,1]")
        e(f"v_pk_fma_f32 {V(IM+2*t)}, {V(50)}, {V(RE+2*t)}, {V(IM+2*t)} op_sel:[1,0,0] op_sel_hi:[1,1,1]")
        e(f"v_pk_fma_f32 {V(RE+2*t)}, {V(50)}, {V(RE+2*t)}, {V(96)} op_sel:[0,0,0] op_sel_hi:[0,1,1] neg_lo:[0,0,1] neg_hi:[0,0,1]")
    e("v_lshlrev_b32 v14, 3, v0"); e("v_lshlrev_b32 v15, 3, v3")
    gl()
    lab("G_POLL")
    e("s_waitcnt vmcnt(0)")
    e("v_mov_b32 v10, 0")
    for j in range(2):
        e(f"v_ashrrev_i32 v11, 31, v{12+j}"); e(f"v_xor_b32 v{G+4*j+1}, s{NON}, v{G+4*j+1}"); e(f"v_xor_b32 v{G+4*j+3}, s{NON}, v{G+4*j+3}")
        e(f"v_or_b32 v{G+4*j+1}, v{G+4*j+1}, v{G+4*j+3}"); e(f"v_bfi_b32 v11, v11, 0, v{G+4*j+1}"); e("v_or_b32 v10, v10, v11")
    e("v_cmp_ne_u32 vcc, 0, v10"); e("s_nop 4"); e("s_cbranch_vccz G_POLL_OK")
    gl(); e("s_branch G_POLL")
    lab("G_POLL_OK"); stamp(8)
    for j in range(2): e(f"v_mov_b32 v{G+4*j+1}, v{G+4*j+2}")
    cmul(96,44,G); cfma(96,46,G+4,96)
    e(f"ds_write_b64 v14, v[96:97] offset:{EB+8192}"); e("s_waitcnt lgkmcnt(0)"); e("s_barrier"); stamp(7)
    e(f"buffer_load_dword v23, v57, {S(92)}, s91 offen sc1")
    for j in range(8): e(f"ds_read_b64 {V(G+2*j)}, v15 offset:{EB+8192+256*j}")
    e("s_waitcnt lgkmcnt(0)")
    for st in (8,4,2):
        for j in range(0,st,2): e(f"v_pk_add_f32 {V(G+j)}, {V(G+j)}, {V(G+j+st)}")
    HX=G
    cmul(98,48,HX)
    e(f"v_pk_add_f32 {V(122)}, {V(122)}, {V(98)}")
    cfma(58,42,98,58)
    cmul(100,50,122); cmul(102,50,58)
    e("v_mov_b32 v96, v100"); e("v_mov_b32 v97, v102"); e("v_mov_b32 v98, v101"); e("v_mov_b32 v99, v103")
    e("v_lshrrev_b32 v56, 5, v0"); e("v_mul_u32_u24 v56, 2304, v56"); e("v_lshl_add_u32 v56, v3, 2, v56")
    pr,pi=96,98
    for t in range(8):
        dr,di=(104,106) if t%2==0 else (108,110)
        step(dr,di,pr,pi,t); pr,pi=dr,di
        e(f"v_cvt_pk_bf16_f32 v{112+2*(t%2)}, v{dr}, -v{di}"); e(f"v_cvt_pk_bf16_f32 v{113+2*(t%2)}, v{dr+1}, -v{di+1}")
        e(f"ds_write_b32 v56, v{112+2*(t%2)} offset:{144*t}"); e(f"ds_write_b32 v56, v{113+2*(t%2)} offset:{144*(t+8)}")
    e("v_lshl_or_b32 v10, v5, 3, v4"); e("v_and_b32 v11, 1, v1"); e("v_lshl_add_u32 v10, v10, 3, v11")
    e("s_lshl_b32 s8, s3, 1"); e("s_sub_u32 s8, 6, s8"); e("v_add_u32 v10, s8, v10")
    e("v_mul_u32_u24 v10, 144, v10"); e("v_lshl_add_u32 v10, v2, 4, v10")
    e("s_lshl_b32 s8, s3, 16"); e("s_lshl_b32 s9, s5, 12"); e("s_add_u32 s8, s8, s9"); e("v_lshlrev_b32 v11, 4, v1")
    e("s_waitcnt lgkmcnt(0)"); e("s_barrier")
    for k in range(4): e(f"ds_read_b128 {V(96+4*k,4)}, v10 offset:{32*k}")
    e("s_waitcnt vmcnt(0)"); flag_check(23,57,92,"s91","GC")
    for k in range(4):
        e(f"s_waitcnt lgkmcnt({3-k})"); e(f"buffer_store_dwordx4 {V(96+4*k,4)}, v11, {S(84)}, s8 offen offset:{1024*k} sc1")
    cld(0)
    e("s_lshl_b32 s8, s4, 13"); e(f"s_add_u32 s8, s8, {WS_FH}"); e("s_lshl_b32 s9, s3, 11"); e("s_add_u32 s9, s9, s8"); e("s_lshl_b32 s10, s5, 7"); e("s_add_u32 s9, s9, s10")
    e("s_lshl_b32 s10, s88, 12"); e("s_add_u32 s91, s8, s10"); e("s_lshl_b32 s10, s3, 9"); e("s_add_u32 s91, s91, s10")
    e("v_mov_b32 v9, v19")
    stamp(9)
    e("s_waitcnt vmcnt(16)"); stamp(14); flag_store(10,92,"s9"); cld(8); e("s_barrier")
    e(f"buffer_load_dword v8, v9, {S(92)}, s91 offen sc1")
    import k2; k2.gen(CR)
```

```python
from common import *
UB=19360; BS=2208; TB=8704
def gen():
    lab("K1_CONV"); STV[0]=255; e("s_setprio 3")
    e("s_and_b32 s4, s2, 7"); e("s_lshl_b32 s4, s4, 5"); e("s_bfe_u32 s8, s2, 0x50003"); e("s_add_u32 s4, s4, s8")
    e("s_lshr_b32 s6, s3, 1"); e("s_and_b32 s7, s3, 1"); e("s_lshl_b32 s5, s4, 1"); e("s_add_u32 s5, s5, s6")
    e("s_lshl_b32 s8, s4, 9"); e("v_lshl_add_u32 v6, v0, 1, s8")
    e("s_lshl_b32 s8, s5, 1"); e("v_mov_b32 v7, s8")
    e("s_and_b32 s8, s4, 31"); e("s_lshl_b32 s8, s8, 16"); e("s_lshr_b32 s9, s4, 5"); e("s_lshl_b32 s9, s9, 7"); e("s_add_u32 s13, s8, s9")
    e("v_lshrrev_b32 v9, 5, v0"); e("v_lshlrev_b32 v8, 11, v3"); e("v_lshl_add_u32 v8, v9, 4, v8")
    e("s_waitcnt lgkmcnt(0)")
    srd(88,52,256)
    e("s_or_b32 s8, s2, s3"); e("s_cmp_lg_u32 s8, 0"); e("s_cbranch_scc1 G_NW")
    e(f"s_or_b32 s{NON}, s96, 1"); flag_store(14,88,"0")
    lab("G_NW")
    if os.environ.get("EXP")=="1": stamp_end(10,8<<20); e("s_endpgm")
    for i in range(4): srd(56+4*i,18+2*i,131072); e(f"buffer_load_ushort v{20+i}, v6, {S(56+4*i)}, 0 offen")
    srd(72,26,1024); e(f"buffer_load_ushort v24, v7, {S(72)}, 0 offen")
    for c in range(4):
        e(f"v_add_u32 v14, {c}, v0"); e("v_lshrrev_b32 v15, 6, v14"); e("v_and_b32 v14, 63, v14")
        e(f"v_mul_u32_u24 v15, {BS}, v15"); e(f"v_lshl_add_u32 v{10+c}, v14, 2, v15")
    e("v_lshrrev_b32 v14, 2, v3"); e("v_and_b32 v15, 3, v3"); e("v_and_b32 v16, 3, v14")
    e("v_mul_u32_u24 v14, 272, v14"); e("v_lshl_add_u32 v14, v15, 2, v14"); e("v_cmp_lt_u32 vcc, v15, v16")
    for i in range(4): e(f"v_mov_b32 v{224+i}, 0")
    e("s_and_saveexec_b64 s[10:11], vcc"); e(f"ds_write_b32 v14, v224 offset:{UB+7*BS}"); e("s_mov_b64 exec, s[10:11]")
    e(f"s_mul_i32 s12, s3, {TB}"); e("v_lshl_add_u32 v16, v1, 2, s12")
    e("v_mul_u32_u24 v17, 272, v3"); e("v_lshl_add_u32 v17, v2, 4, v17"); e("v_add_u32 v17, s12, v17")
    stamp(1); e("s_waitcnt vmcnt(0)"); stamp(2); e("s_mov_b32 m0, s12")
    for r in range(20,25): e(f"v_lshlrev_b32 v{r}, 16, v{r}")
    expbf(24,24); expbf(20,20)
    e("v_mul_f32 v20, v20, v24"); e("v_mul_f32 v21, v21, v24")
    e(f"v_mul_f32 v20, {fl(-1.4426950408889634)}, v20"); e(f"v_mul_f32 v21, {INV2PI}, v21")
    e("v_add_f32 v24, v24, v24"); e("v_mul_f32 v22, v22, v24"); e("v_mul_f32 v23, v23, v24")
    Z8,Z16,Z1,Z2,Z4,Z256=26,28,30,32,34,36
    cexp(Z8,20,21,fl(8),18); cexp(Z16,20,21,fl(16),18)
    srd(76,16,2097152)
    e(f"buffer_load_dwordx4 v[200:203], v8, {S(76)}, s13 offen"); e(f"buffer_load_dwordx4 v[204:207], v8, {S(76)}, s13 offen offset:1024")
    srd(80,40,524288); srd(84,42,524288); srd(72,48,1024); srd(92,54,WSSZ)
    e("s_lshr_b32 s8, s4, 4"); e("s_lshl_b32 s8, s8, 15"); e("s_and_b32 s9, s4, 15"); e("s_lshl_b32 s9, s9, 6"); e("s_add_u32 s8, s8, s9")
    e("s_lshl_b32 s9, s3, 4"); e("s_add_u32 s8, s8, s9")
    e("v_lshlrev_b32 v14, 10, v3"); e("v_lshl_add_u32 v14, v2, 3, v14")
    e(f"buffer_load_dwordx2 v[208:209], v14, {S(80)}, s8 offen"); e(f"buffer_load_dwordx2 v[210:211], v14, {S(84)}, s8 offen")
    e("s_lshl_b32 s8, s4, 13"); e("s_lshl_b32 s9, s3, 11"); e("s_add_u32 s8, s8, s9"); e("v_lshlrev_b32 v14, 4, v1")
    e(f"buffer_load_dwordx4 v[212:215], v14, {S(76)}, s8 offen"); e(f"buffer_load_dwordx4 v[216:219], v14, {S(76)}, s8 offen offset:1024")
    e(f"buffer_load_dwordx4 v[220:223], v14, {S(72)}, 0 offen")
    nonce_issue(25,88); e("s_setprio 1" if os.environ.get("PR")=="1" else "s_setprio 0")
    e("s_andn2_b32 s8, s4, 31"); e("s_lshl_b32 s8, s8, 14"); e("s_and_b32 s9, s4, 31"); e("s_lshl_b32 s9, s9, 9"); e("s_add_u32 s13, s8, s9"); e(f"s_add_u32 s13, s13, {WS_XT}")
    e("v_lshlrev_b32 v8, 16, v9"); e("v_lshl_add_u32 v8, v3, 4, v8")
    e("s_mov_b32 s14, 0x05040100"); e("s_mov_b32 s15, 0x07060302")
    tmp=[60]
    def put(row,r,neg):
        t=tmp[0]; tmp[0]=60+(t-59)%4
        e(f"v_cvt_pk_bf16_f32 v{t}, v{r}, {'-' if neg else ''}v{r+1}"); e(f"ds_write_addtid_b32 v{t} offset:{272*row}")
    e("v_mov_b32 v60, 0x3f80"); e("ds_write_addtid_b32 v60"); tmp[0]=61
    put(1,Z8,0); put(2,Z16,0)
    ev,od=Z16,Z8
    for c in range(3,32):
        if c%2: n=40+((c>>1)%2)*2; cmul(n,od,Z16); od=n
        else:   n=44+((c>>1)%2)*2; cmul(n,ev,Z16); ev=n
        put(c,n,0)
    GF=128; RF=160
    stamp(13)
    e("s_waitcnt vmcnt(0)"); nonce_check(25,88,"C")
    for k in range(4):
        t=228+4*k
        e(f"v_perm_b32 v{t}, v{204+k}, v{200+k}, s14"); e(f"v_mov_b32 v{t+1}, s{NON}"); e(f"v_perm_b32 v{t+2}, v{204+k}, v{200+k}, s15"); e(f"v_mov_b32 v{t+3}, s{NON}")
        e(f"buffer_store_dwordx4 {V(t,4)}, v8, {S(92)}, s13 offen sc1"); e("s_add_u32 s13, s13, 16384")
    e("v_perm_b32 v244, v210, v208, s14"); e("v_perm_b32 v245, v210, v208, s15"); e("v_perm_b32 v246, v211, v209, s14"); e("v_perm_b32 v247, v211, v209, s15")
    e("s_lshl_b32 s8, s4, 12"); e(f"s_add_u32 s8, s8, {WS_C}"); e("v_lshlrev_b32 v9, 4, v0")
    e(f"buffer_store_dwordx4 v[244:247], v9, {S(92)}, s8 offen sc1"); stamp(7)
    for s in range(8): e(f"ds_read_b128 {V(GF+4*s,4)}, v17 offset:{32*s}")
    e("s_lshl_b32 s98, s4, 14"); e(f"s_add_u32 s98, s98, {WS_XT}"); e("v_add_u32 v8, 8192, v9")
    def xtl():
        for q in range(4): e(f"buffer_load_dwordx4 {V(228+4*q,4)}, v{9 if q<2 else 8}, {S(92)}, s98 offen offset:{(q&1)*4096-(q&1)*16 if 0 else 0} sc1") if not (q&1) else e(f"buffer_load_dwordx4 {V(228+4*q,4)}, v{9 if q<2 else 8}, {S(92)}, s97 offen sc1")
    e("s_add_u32 s97, s98, 4096")
    cexp(Z1,20,21,"1.0",18); cexp(Z2,20,21,"2.0",18); cexp(Z4,20,21,"4.0",18); cexp(Z256,20,21,fl(256),18)
    def row(h,reg): return (reg&3)+4*h+8*(reg>>2)
    for k in range(1,8): cmul(64+2*k, 22 if k==1 else 62+2*k, Z256)
    e("s_waitcnt lgkmcnt(0)"); stamp(11)
    put(row(0,0),22,1); cmul(40,22,Z1); put(row(0,1),40,1)
    ev,od=22,40
    for j in range(2,8):
        if j%2: n=42 if od!=42 else 40; cmul(n,od,Z2); od=n
        else:   n=44 if ev!=44 else 46; cmul(n,ev,Z2); ev=n
        put(row(0,j),n,1)
    put(row(0,8),66,1); cmul(40,66,Z2); put(row(0,9),40,1); cmul(42,66,Z4); put(row(0,10),42,1)
    cmul(44,40,Z4); put(row(0,11),44,1); cmul(46,66,Z8); put(row(0,12),46,1)
    for (h,r0,b) in ((0,13,68),(1,0,70)):
        put(row(h,r0),b,1); cmul(40,b,Z4); put(row(h,r0+1),40,1); cmul(42,b,Z8); put(row(h,r0+2),42,1)
    for k in range(4):
        put(row(1,3+2*k),72+2*k,1); cmul(44+2*(k%2),72+2*k,Z8); put(row(1,4+2*k),44+2*(k%2),1)
    for s in range(8): e(f"ds_read_b128 {V(RF+4*s,4)}, v17 offset:{32*s}")
    D=64; stamp(3)
    for s in range(8):
        e(f"s_waitcnt lgkmcnt({7-s})")
        e(f"v_mfma_f32_32x32x16_bf16 {V(D,16)}, {V(RF+4*s,4)}, {V(GF+4*s,4)}, {'0' if s==0 else V(D,16)}")
    e("s_lshl_b32 s8, s4, 9"); e("s_lshl_b32 s9, s3, 7"); e("s_add_u32 s8, s8, s9"); e(f"s_add_u32 s8, s8, {WS_FC}")
    e("s_waitcnt vmcnt(0)"); flag_store(18,92,"s8")
    xtl(); stamp(12)
    def uput(q):
        for c in range(4):
            e(f"ds_write_b32 v{10+c}, v{228+4*q} offset:{UB+(7+4*q)*BS+272*c}"); e(f"ds_write_b32 v{10+c}, v{230+4*q} offset:{UB+(7+4*q)*BS+272*(4+c)}")
    e("v_lshl_add_u32 v16, v1, 4, s12"); e("s_xor_b32 s13, s3, 1"); e(f"s_mul_i32 s13, s13, {TB}"); e("v_lshl_add_u32 v17, v1, 4, s13")
    e("s_nop 7")
    for k in range(4): e(f"ds_write_b128 v16, {V(D+4*k,4)} offset:{1024*k}")
    e("s_waitcnt lgkmcnt(0)"); e("s_barrier")
    for k in range(4): e(f"ds_read_b128 {V(80+4*k,4)}, v17 offset:{1024*k}")
    e("s_waitcnt lgkmcnt(0)"); e("s_barrier")
    for k in range(8): e(f"v_pk_add_f32 {V(D+2*k)}, {V(D+2*k)}, {V(80+2*k)}")
    e("v_lshlrev_b32 v16, 4, v0")
    for k in range(3): e(f"ds_write_b128 v16, v[224:227] offset:{UB+4096*k}")
    e("v_min_u32 v16, 3152, v16"); e(f"ds_write_b128 v16, v[224:227] offset:{UB+12288}")
    e("s_mul_i32 s12, s6, 8960"); e("s_mul_i32 s13, s7, 4480"); e("s_add_u32 s13, s13, s12")
    e("v_and_b32 v16, 15, v1"); e("v_lshl_add_u32 v16, v16, 4, s13"); e("ds_write_b128 v16, v[224:227] offset:4096")
    e("v_sub_u32 v16, 31, v3"); e("v_lshl_add_u32 v16, v16, 4, s13")
    e("v_and_b32 v17, 1, v1"); e("v_cmp_eq_u32 vcc, 1, v17"); e("s_nop 1")
    def chunk(kb,el,r):
        for q in range(4):
            hi=6+r-2*q
            e(f"v_cvt_pk_bf16_f32 v{80+q}, v{el[hi]}, v{el[hi-1]}")
        e(f"ds_write_b128 v16, v[80:83] offset:{512*(7-kb)}"); e("s_nop 0")
    def els(lst,prev):
        d={i:x for i,x in enumerate(lst)}; d[-1]=prev; return d
    def r2(b): return els([b,b,b,b+1,b+1,b+1,b+2,b+2],b)
    for k in range(4): e(f"v_cndmask_b32 v{84+k}, v{D+3+2*k}, v{D+4+2*k}, vcc")
    e("s_cmp_eq_u32 s7, 0"); e("s_cbranch_scc1 C_R0")
    for r in (1,0):
        if r==0: lab("C_R0")
        e("s_mov_b32 exec_hi, 0")
        chunk(0,els([D+i for i in range(8)],224),r)
        chunk(1,els([D+8,D+8,D+9,D+10,D+10,D+10,D+11,D+12],D+8),r)
        chunk(2,r2(D+13),r)
        if r==0:
            e(f"v_cvt_pk_bf16_f32 v80, v{D+7}, v{D+7}"); e(f"ds_write_b16 v16, v80 offset:{512*7-2}")
        e("s_mov_b32 exec_hi, -1"); e("s_mov_b32 exec_lo, 0")
        chunk(3,r2(D),r)
        for k in range(4):
            a=D+3+2*k; chunk(4+k,els([a,a,a,a,84+k,a+1,a+1,a+1],a),r)
        e("s_mov_b32 exec_lo, -1")
        if r==1: e("s_branch C_RD")
    lab("C_RD")
    stamp(4)
    stamp(5); e("s_waitcnt vmcnt(0)")
    lab("C_XL")
    e(f"v_xor_b32 v18, s{NON}, v229")
    for r in range(231,244,2): e(f"v_xor_b32 v19, s{NON}, v{r}"); e("v_or_b32 v18, v18, v19")
    e("v_cmp_ne_u32 vcc, 0, v18"); e("s_nop 4"); e("s_cbranch_vccz C_XOK")
    e("s_sleep 8"); xtl(); e("s_waitcnt vmcnt(0)"); e("s_branch C_XL")
    lab("C_XOK"); stamp(6)
    for q in range(4): uput(q)
    e("v_lshl_or_b32 v18, v5, 3, v4"); e("v_sub_u32 v18, v2, v18"); e("v_add_u32 v18, 15, v18"); e("v_and_b32 v19, 1, v1"); e("v_mul_u32_u24 v19, 4480, v19")
    e("v_lshl_add_u32 v20, v18, 4, v19"); e("s_xor_b32 s9, s7, 1"); e("s_lshl_b32 s8, s9, 10"); e("s_add_u32 s8, s8, s12"); e("v_add_u32 v20, s8, v20")
    e("v_and_b32 v18, 3, v1"); e("v_bfe_u32 v19, v1, 3, 1"); e("v_lshl_or_b32 v22, v19, 2, v18")
    e("v_bfe_u32 v19, v1, 4, 1"); e("v_lshl_or_b32 v23, v5, 1, v19")
    e(f"v_mul_u32_u24 v18, {BS}, v22"); e("v_mul_u32_u24 v19, 272, v23"); e("v_add_u32 v18, v18, v19"); e("v_lshl_add_u32 v21, v2, 4, v18")
    e(f"s_mul_i32 s8, s9, {4*BS}"); e("s_mul_i32 s9, s6, 1088"); e("s_add_u32 s8, s8, s9"); e("v_add_u32 v21, s8, v21")
    e("s_waitcnt lgkmcnt(0)"); e("s_barrier")
    stamp(8); e("s_setprio 0"); T0,T1,F=64,80,96; NB=3
    def rd(s):
        if s>=32: return []
        f=F+16*(s%NB); ob=UB+(3-(s>>3))*BS+224-32*(s&7)
        return [f"ds_read_b128 {V(f,4)}, v20 offset:{3040-32*s}", f"ds_read_b128 {V(f+4,4)}, v21 offset:{ob}",
                f"ds_read_b128 {V(f+8,4)}, v21 offset:{ob+8*BS}", f"ds_read_b128 {V(f+12,4)}, v20 offset:{992-32*s}"]
    for x in rd(0)+rd(1): e(x)
    for s in range(32):
        f=F+16*(s%NB); r=rd(s+2)
        e(f"s_waitcnt lgkmcnt({4 if s<31 else 0})")
        e(f"v_mfma_f32_32x32x16_bf16 {V(T0,16)}, {V(f,4)}, {V(f+4,4)}, {'0' if s==0 else V(T0,16)}")
        for x in r[:2]: e(x)
        e(f"v_mfma_f32_32x32x16_bf16 {V(T1,16)}, {V(f,4)}, {V(f+8,4)}, {'0' if s==0 else V(T1,16)}")
        for x in r[2:3]: e(x)
        e(f"v_mfma_f32_32x32x16_bf16 {V(T1,16)}, {V(f+12,4)}, {V(f+4,4)}, {V(T1,16)}")
        for x in r[3:]: e(x)
    stamp(9); e("s_barrier")
    e("s_lshl_b32 s8, s3, 12"); e("v_lshl_add_u32 v16, v1, 4, s8"); e("v_xor_b32 v17, 4096, v16")
    e("s_lshl_b32 s8, s5, 12"); e("s_lshl_b32 s9, s7, 11"); e("s_add_u32 s8, s8, s9"); e(f"s_add_u32 s8, s8, {WS_Y}")
    e("v_lshl_or_b32 v18, v22, 2, v23"); e("v_lshl_or_b32 v18, v18, 1, v2"); e("v_lshlrev_b32 v18, 4, v18")
    e("s_nop 3"); e("s_cmp_eq_u32 s7, 0"); e("s_cbranch_scc1 C_F0")
    for ww in (1,0):
        if ww==0: lab("C_F0")
        keep,send=(T1,T0) if ww else (T0,T1)
        for k in range(4): e(f"ds_write_b128 v16, {V(send+4*k,4)} offset:{1024*k}")
        e("s_waitcnt lgkmcnt(0)"); e("s_barrier")
        for k in range(4): e(f"ds_read_b128 {V(96+4*k,4)}, v17 offset:{1024*k}")
        e("s_waitcnt lgkmcnt(0)")
        for k in range(8):
            e(f"v_pk_add_f32 {V(96+2*k)}, {V(96+2*k)}, {V(keep+2*k)}"); e(f"v_cvt_pk_bf16_f32 v{112+k}, v{96+2*k}, v{97+2*k}")
        e(f"buffer_store_dwordx4 v[112:115], v18, {S(92)}, s8 offen sc1"); e(f"buffer_store_dwordx4 v[116:119], v18, {S(92)}, s8 offen offset:1024 sc1")
        if ww: e("s_branch C_FD")
    lab("C_FD")
    for rr in range(2):
        for i in range(4):
            x=212+4*rr+i
            e(f"v_lshlrev_b32 v84, 16, v{x}"); e(f"v_and_b32 v85, 0xffff0000, v{x}")
            e(f"v_lshlrev_b32 v86, 16, v{220+i}"); e(f"v_and_b32 v87, 0xffff0000, v{220+i}")
            e("v_pk_mul_f32 v[84:85], v[84:85], v[86:87]"); e("v_cvt_pk_bf16_f32 v84, v84, v85")
            e("v_and_b32 v85, 0xffff0000, v84"); e("v_lshlrev_b32 v84, 16, v84")
            if i==0: e(f"v_add_f32 v{88+rr}, v84, v85")
            else: e(f"v_add_f32 v{88+rr}, v{88+rr}, v84"); e(f"v_add_f32 v{88+rr}, v{88+rr}, v85")
    for md in ("row_shr:1","row_shr:2","row_shr:4","row_shr:8","row_bcast:15 row_mask:0xa","row_bcast:31 row_mask:0xc"):
        e("s_nop 0")
        for rr in range(2): e(f"v_add_f32_dpp v{88+rr}, v{88+rr}, v{88+rr} {md}")
    for rr in range(2):
        bfr(88+rr,88+rr); e(f"v_mul_f32 v{88+rr}, {fl(-1.4426950408889634)}, v{88+rr}"); e(f"v_exp_f32 v{88+rr}, v{88+rr}"); e("s_nop 0")
        e(f"v_add_f32 v{88+rr}, 1.0, v{88+rr}"); e(f"v_rcp_f32 v{88+rr}, v{88+rr}"); e("s_nop 0")
    e("v_cvt_pk_bf16_f32 v88, v88, v89"); e(f"v_mov_b32 v89, s{NON}")
    e("s_lshr_b32 s8, s4, 3"); e("s_lshr_b32 s9, s4, 1"); e("s_xor_b32 s8, s8, s9"); e("s_lshr_b32 s9, s4, 2"); e("s_xor_b32 s8, s8, s9"); e("s_and_b32 s8, s8, 1"); e("s_lshl_b32 s8, s8, 6")
    e("s_and_b32 s9, s4, 7"); e("s_lshl_b32 s9, s9, 3"); e("s_add_u32 s8, s8, s9")
    e("s_lshr_b32 s9, s4, 4"); e("s_lshl_b32 s9, s9, 9"); e("s_add_u32 s8, s8, s9")
    e("s_sub_u32 s9, 3, s3"); e("s_lshl_b32 s9, s9, 7"); e("s_add_u32 s8, s8, s9"); e(f"s_add_u32 s8, s8, {WS_G}")
    e("v_cmp_eq_u32 vcc, 63, v1"); e("v_mov_b32 v18, 0x7ffffff0"); e("s_nop 0"); e("v_cndmask_b32 v18, v18, v224, vcc")
    e(f"buffer_store_dwordx2 v[88:89], v18, {S(92)}, s8 offen sc1")
    e("s_lshl_b32 s8, s5, 7"); e("s_lshl_b32 s9, s7, 16"); e("s_add_u32 s8, s8, s9"); e(f"s_add_u32 s8, s8, {WS_FY}"); e("s_waitcnt vmcnt(1)"); flag_store(18,92,"s8")
    stamp_end(10,8<<20); e("s_endpgm")
```

```python
from common import *
def gen():
    lab("K1_GEMM"); stamp_mv(63)
    e("s_and_b32 s6, s2, 7"); e("s_bfe_u32 s7, s2, 0x50003")
    e("s_lshr_b32 s4, s6, 1"); e("s_lshl_b32 s4, s4, 2"); e("s_and_b32 s8, s7, 3"); e("s_add_u32 s4, s4, s8")
    e("s_and_b32 s5, s6, 1"); e("s_lshl_b32 s5, s5, 3"); e("s_lshr_b32 s8, s7, 2"); e("s_add_u32 s5, s5, s8")
    e("s_bfe_u32 s88, s7, 0x10002"); e("s_and_b32 s89, s6, 1"); e("s_lshl_b32 s89, s89, 2"); e("s_lshr_b32 s9, s7, 3"); e("s_add_u32 s89, s89, s9")
    e("s_and_b32 s90, s7, 3"); e("s_lshl_b32 s90, s90, 1"); e("s_add_u32 s90, s90, s8"); e("s_lshl_b32 s90, s90, 7")
    e("v_lshrrev_b32 v6, 3, v1"); e("v_and_b32 v7, 7, v1")
    e("v_bfe_u32 v8, v6, 1, 1")
    e("v_xor_b32 v7, v7, v8")
    e("v_and_b32 v9, 1, v6"); e("v_lshl_or_b32 v9, v9, 3, v8")
    e("v_lshrrev_b32 v10, 2, v6"); e("v_lshl_or_b32 v9, v10, 4, v9")
    e("s_lshl_b32 s8, s3, 5"); e("v_add_u32 v9, s8, v9")
    for q in range(4):
        e(f"v_xor_b32 v10, {2*q}, v7"); e(f"v_lshlrev_b32 v10, 4, v10")
        e(f"v_add_u32 v11, {2*q}, v9"); e(f"v_lshl_add_u32 v{12+q}, v11, 10, v10")
    e("s_and_b32 s8, s3, 1"); e("s_lshl_b32 s9, s8, 2"); e("s_lshl_b32 s8, s8, 4")
    for qq in range(2):
        e(f"v_xor_b32 v10, s9, v7"); e(f"v_xor_b32 v10, {2*qq}, v10"); e("v_lshlrev_b32 v10, 4, v10")
        e(f"v_add3_u32 v11, s8, v6, {8*qq}"); e(f"v_lshl_add_u32 v{16+qq}, v11, 10, v10")
    e("s_waitcnt lgkmcnt(0)")
    if os.environ.get("EXP")=="3": stamp_end(6,8<<20); e("s_endpgm")
    e("s_lshl_b32 s8, s4, 17"); srd(56,16,131072,"s8")
    e("s_cmp_lt_u32 s3, 2"); e("s_cselect_b32 s10, s36, s38"); e("s_cselect_b32 s11, s37, s39")
    e("s_lshl_b32 s8, s5, 15"); srd(60,10,32768,"s8")
    srd(64,32,1024); srd(68,34,1024); srd(72,44,1024)
    e("s_lshl_b32 s8, s5, 13"); e(f"s_add_u32 s8, s8, {WS_E}"); srd(76,54,8192,"s8")
    srd(80,52,256)
    e("s_lshl_b32 s8, s4, 18"); srd(84,54,262144,"s8")
    e("s_lshl_b32 s8, s5, 6"); e("v_lshl_add_u32 v10, v3, 1, s8")
    e(f"buffer_load_ushort v20, v10, {S(64)}, 0 offen"); e(f"buffer_load_ushort v21, v10, {S(68)}, 0 offen"); e(f"buffer_load_ushort v22, v10, {S(72)}, 0 offen")
    e("s_lshl_b32 s8, s4, 9"); e("v_lshl_add_u32 v18, v3, 4, s8"); e("v_mov_b32 v10, 0x7ffffff0")
    e("v_cmp_lt_u32 vcc, 223, v0"); e("v_mov_b32 v24, 0"); e("v_mov_b32 v25, 0"); e("v_cndmask_b32 v18, v10, v18, vcc")
    e("v_mov_b32 v26, 0"); e("v_mov_b32 v27, 0")
    srd(92,54,WSSZ)
    e("s_lshl_b32 s13, s3, 12"); e("s_lshl_b32 s14, s3, 11"); e("s_add_u32 s14, s14, 16384")
    def dma(st):
        b=(st%3)*24576
        e(f"s_add_u32 s15, s90, {128*st}"); e("s_and_b32 s15, s15, 1023")
        for q in range(4):
            e(f"s_add_u32 m0, s13, {b+1024*q}"); e("s_nop 0"); e(f"buffer_load_dwordx4 v{12+q}, {S(56)}, s15 offen lds")
        for q in range(2):
            e(f"s_add_u32 m0, s14, {b+1024*q}"); e("s_nop 0"); e(f"buffer_load_dwordx4 v{16+q}, {S(60)}, s15 offen lds")
    for st in range(2): dma(st)
    if os.environ.get("PR")!="1": e("s_setprio 3")
    for s in range(4):
        e(f"v_or_b32 v10, {2*s}, v2"); e("v_xor_b32 v10, v10, v4"); e("v_lshlrev_b32 v10, 4, v10")
        e(f"v_lshl_add_u32 v{28+s}, v3, 7, v10"); e(f"v_add_u32 v{32+s}, s13, v{28+s}"); e(f"v_add_u32 v{28+s}, 16384, v{28+s}")
    n0=len(L)
    for r in (20,21,22): e(f"v_lshlrev_b32 v{r}, 16, v{r}")
    expbf(22,22)
    e("v_mul_f32 v36, v22, v20"); e("v_mul_f32 v37, v22, v21")
    e(f"v_mul_f32 v36, {LOG2E}, v36"); e(f"v_mul_f32 v37, {INV2PI}, v37")
    cexp(40,36,37,"1.0",38); cexp(42,36,37,fl(8),38); cexp(8,36,37,fl(16),38);
    e("s_lshl_b32 s8, s3, 2"); e("s_sub_u32 s8, 15, s8"); e("v_sub_u32 v10, s8, v2"); e("v_lshlrev_b32 v10, 7, v10"); e("v_cvt_f32_u32 v10, v10")
    cexp(44,36,37,"v10",38); e(f"v_add_f32 v10, {fl(-256)}, v10"); cexp(46,36,37,"v10",38)
    e("v_lshrrev_b32 v10, 5, v0"); e("v_lshlrev_b32 v10, 4, v10"); e("v_cvt_f32_u32 v10, v10")
    cexp(48,36,37,"v10",38)
    e("v_mul_f32 v38, v20, v20"); e("v_fmac_f32 v38, v21, v21"); e("v_rcp_f32 v38, v38")
    e("v_add_f32 v52, -1.0, v40"); e("v_mov_b32 v53, v41"); e("v_add_f32 v38, v38, v38")
    e("v_mul_f32 v54, v20, v38"); e("v_mul_f32 v55, v21, v38"); e("v_sub_f32 v55, 0, v55")
    cmul(50,52,54)
    RE=64; IM=80; FR=96
    e("v_bfe_u32 v19, v1, 2, 1"); e("v_and_b32 v10, 3, v1"); e("v_lshlrev_b32 v10, 7, v10"); e("v_lshl_add_u32 v19, v19, 11, v10")
    e("v_bfe_u32 v57, v1, 4, 1"); e("v_and_b32 v10, 15, v1"); e("v_lshlrev_b32 v10, 7, v10"); e("v_lshl_add_u32 v57, v57, 13, v10")
    e("s_lshl_b32 s91, s89, 14"); e("s_lshl_b32 s8, s3, 11"); e("s_add_u32 s91, s91, s8"); e(f"s_add_u32 s91, s91, {WS_FC}")
    e("s_lshl_b32 s8, s89, 17"); e(f"s_add_u32 s8, s8, {WS_C}"); srd(64,54,131072,"s8")
    e("s_lshl_b32 s8, s3, 14"); e("v_lshl_add_u32 v6, v1, 4, s8"); e("s_and_b32 s8, s3, 1"); e("s_lshl_b32 s8, s8, 16"); e("v_add_u32 v6, s8, v6"); e("v_xor_b32 v7, 0x10000, v6")
    coefs=L[n0:]; del L[n0:]
    def CR(ks,nt): return (192 if ks<8 else 128-64)+8*ks+4*nt
    def cld(k0,k1):
        for ks in range(k0,k1):
            if ks%4==0: e(f"s_mov_b32 s15, {1024*ks}")
            for nt in range(2): e(f"buffer_load_dwordx4 {V(CR(ks,nt),4)}, v{6+nt}, {S(64)}, s15 offen offset:{1024*(ks%4)} sc1")
    def rds(k,s):
        b=(k%3)*24576; f=FR+48*(k%2)+12*s
        return [f"ds_read_b128 {V(f,4)}, v{32+s} offset:{b}", f"ds_read_b128 {V(f+4,4)}, v{28+s} offset:{b}", f"ds_read_b128 {V(f+8,4)}, v{28+s} offset:{b+4096}"]
    stamp(1); e("s_waitcnt vmcnt(6)"); e("s_barrier"); stamp(3)
    for s in range(4):
        for x in rds(0,s): e(x)
    dma(2)
    waits=[6,6,6,7,6,6,0,None]
    for k in range(8):
        if k<7: e(f"s_waitcnt vmcnt({waits[k]}) lgkmcnt(0)"); e("s_barrier")
        else: e("s_waitcnt lgkmcnt(0)")
        if k in (2,6): stamp({2:4,6:5}[k])
        fill=[]
        if k<7:
            for s in range(4): fill.append(rds(k+1,s))
        n0=len(L)
        if k+3<8: dma(k+3)
        dl=L[n0:]; del L[n0:]
        dg=[dl[:5]]+[dl[5+3*i:8+3*i] for i in range(5)] if dl else []
        i=0
        for s in range(4):
            for (acc,o) in ((RE,4),(IM,8)):
                f=FR+48*(k%2)+12*s
                c="0" if (k==0 and s==0) else V(acc,16)
                e(f"v_mfma_f32_32x32x16_bf16 {V(acc,16)}, {V(f,4)}, {V(f+o,4)}, {c}")
                if i<len(dg): L.extend(dg[i])
                if i>=1 and i-1<len(fill):
                    for x in fill[i-1]: e(x)
                if k>=5:
                    L.extend(coefs[:6]); del coefs[:6]
                i+=1
        if k==2: nonce_issue(62,80)
        if k==4: nonce_check(62,80,"G"); e("s_setprio 3")
    assert not coefs, len(coefs)
    if os.environ.get("EXP") in ("1","2"): stamp_end(6,8<<20); e("s_endpgm")
    EB=49152
    e("s_nop 1"); e("v_lshlrev_b32 v56, 4, v0"); e(f"ds_write_b128 v56, v[24:27] offset:{EB}")
    e("v_lshrrev_b32 v56, 5, v0"); e("v_lshlrev_b32 v56, 8, v56"); e("v_lshl_add_u32 v56, v3, 3, v56")
    e("s_nop 7")
    def step(dr,di,pr,pi,t):
        e(f"v_pk_fma_f32 {V(dr)}, {V(40)}, {V(pr)}, {V(RE+2*t)} op_sel:[0,0,0] op_sel_hi:[0,1,1]")
        e(f"v_pk_fma_f32 {V(di)}, {V(40)}, {V(pi)}, {V(IM+2*t)} op_sel:[0,0,0] op_sel_hi:[0,1,1]")
        e(f"v_pk_fma_f32 {V(dr)}, {V(40)}, {V(pi)}, {V(dr)} op_sel:[1,0,0] op_sel_hi:[1,1,1] neg_lo:[1,0,0] neg_hi:[1,0,0]")
        e(f"v_pk_fma_f32 {V(di)}, {V(40)}, {V(pr)}, {V(di)} op_sel:[1,0,0] op_sel_hi:[1,1,1]")
    pr,pi=RE,IM
    for t in range(1,8):
        dr,di=(96,98) if t%2 else (100,102)
        step(dr,di,pr,pi,t); pr,pi=dr,di
    e("v_mov_b32 v58, v96"); e("v_mov_b32 v59, v98"); e("v_mov_b32 v60, v97"); e("v_mov_b32 v61, v99")
    cfma(60,42,58,60)
    e(f"ds_write_b64 v56, v[60:61] offset:{EB+4096}")
    e("s_waitcnt lgkmcnt(0)"); e("s_barrier")
    for j in range(7): e(f"ds_read_b64 {V(110+2*j)}, v56 offset:{EB+4096-7*256+256*j}")
    for j in range(1,7):
        e(f"s_waitcnt lgkmcnt({6-j})"); cfma(110+2*j,8,110+2*j-2,110+2*j)
    cfma(60,8,122,60)
    e("v_mov_b32 v24, v60"); e(f"v_mov_b32 v25, s{NON}"); e("v_mov_b32 v26, v61"); e(f"v_mov_b32 v27, s{NON}")
    e(f"buffer_store_dwordx4 v[24:27], v18, {S(76)}, 0 offen sc1")
    stamp(6); cfma(58,42,122,58)
    e("s_lshl_b32 s8, s4, 9"); e("s_lshl_b32 s9, s3, 11"); e("s_add_u32 s8, s8, s9"); e("s_sub_u32 s8, s8, 8192"); e("v_lshl_add_u32 v12, v1, 4, s8"); e("v_add_u32 v13, 1024, v12")
    G=128
    def gl():
        for j in range(2): e(f"buffer_load_dwordx4 {V(G+4*j,4)}, v{12+j}, {S(76)}, 0 offen sc1")
    for t in range(8):
        e(f"v_pk_mul_f32 {V(96)}, {V(50)}, {V(IM+2*t)} op_sel:[1,0] op_sel_hi:[1,1]")
        e(f"v_pk_mul_f32 {V(IM+2*t)}, {V(50)}, {V(IM+2*t)} op_sel:[0,0] op_sel_hi:[0,1]")
        e(f"v_pk_fma_f32 {V(IM+2*t)}, {V(50)}, {V(RE+2*t)}, {V(IM+2*t)} op_sel:[1,0,0] op_sel_hi:[1,1,1]")
        e(f"v_pk_fma_f32 {V(RE+2*t)}, {V(50)}, {V(RE+2*t)}, {V(96)} op_sel:[0,0,0] op_sel_hi:[0,1,1] neg_lo:[0,0,1] neg_hi:[0,0,1]")
    e("v_lshlrev_b32 v14, 3, v0"); e("v_lshlrev_b32 v15, 3, v3")
    gl()
    lab("G_POLL")
    e("s_waitcnt vmcnt(0)")
    e("v_mov_b32 v10, 0")
    for j in range(2):
        e(f"v_ashrrev_i32 v11, 31, v{12+j}"); e(f"v_xor_b32 v{G+4*j+1}, s{NON}, v{G+4*j+1}"); e(f"v_xor_b32 v{G+4*j+3}, s{NON}, v{G+4*j+3}")
        e(f"v_or_b32 v{G+4*j+1}, v{G+4*j+1}, v{G+4*j+3}"); e(f"v_bfi_b32 v11, v11, 0, v{G+4*j+1}"); e("v_or_b32 v10, v10, v11")
    e("v_cmp_ne_u32 vcc, 0, v10"); e("s_nop 4"); e("s_cbranch_vccz G_POLL_OK")
    gl(); e("s_branch G_POLL")
    lab("G_POLL_OK"); stamp(8)
    for j in range(2): e(f"v_mov_b32 v{G+4*j+1}, v{G+4*j+2}")
    cmul(96,44,G); cfma(96,46,G+4,96)
    e(f"ds_write_b64 v14, v[96:97] offset:{EB+8192}"); e("s_waitcnt lgkmcnt(0)"); e("s_barrier"); stamp(7)
    e(f"buffer_load_dword v23, v57, {S(92)}, s91 offen sc1")
    for j in range(8): e(f"ds_read_b64 {V(G+2*j)}, v15 offset:{EB+8192+256*j}")
    e("s_waitcnt lgkmcnt(0)")
    for st in (8,4,2):
        for j in range(0,st,2): e(f"v_pk_add_f32 {V(G+j)}, {V(G+j)}, {V(G+j+st)}")
    HX=G
    cmul(98,48,HX)
    e(f"v_pk_add_f32 {V(122)}, {V(122)}, {V(98)}")
    cfma(58,42,98,58)
    cmul(100,50,122); cmul(102,50,58)
    e("v_mov_b32 v96, v100"); e("v_mov_b32 v97, v102"); e("v_mov_b32 v98, v101"); e("v_mov_b32 v99, v103")
    e("v_lshrrev_b32 v56, 5, v0"); e("v_mul_u32_u24 v56, 2304, v56"); e("v_lshl_add_u32 v56, v3, 2, v56")
    pr,pi=96,98
    for t in range(8):
        dr,di=(104,106) if t%2==0 else (108,110)
        step(dr,di,pr,pi,t); pr,pi=dr,di
        e(f"v_cvt_pk_bf16_f32 v{112+2*(t%2)}, v{dr}, -v{di}"); e(f"v_cvt_pk_bf16_f32 v{113+2*(t%2)}, v{dr+1}, -v{di+1}")
        e(f"ds_write_b32 v56, v{112+2*(t%2)} offset:{144*t}"); e(f"ds_write_b32 v56, v{113+2*(t%2)} offset:{144*(t+8)}")
    e("v_lshl_or_b32 v10, v5, 3, v4"); e("v_and_b32 v11, 1, v1"); e("v_lshl_add_u32 v10, v10, 3, v11")
    e("s_lshl_b32 s8, s3, 1"); e("s_sub_u32 s8, 6, s8"); e("v_add_u32 v10, s8, v10")
    e("v_mul_u32_u24 v10, 144, v10"); e("v_lshl_add_u32 v10, v2, 4, v10")
    e("s_lshl_b32 s8, s3, 16"); e("s_lshl_b32 s9, s5, 12"); e("s_add_u32 s8, s8, s9"); e("v_lshlrev_b32 v11, 4, v1")
    e("s_waitcnt lgkmcnt(0)"); e("s_barrier")
    for k in range(4): e(f"ds_read_b128 {V(96+4*k,4)}, v10 offset:{32*k}")
    e("s_waitcnt vmcnt(0)"); flag_check(23,57,92,"s91","GC")
    for k in range(4):
        e(f"s_waitcnt lgkmcnt({3-k})"); e(f"buffer_store_dwordx4 {V(96+4*k,4)}, v11, {S(84)}, s8 offen offset:{1024*k} sc1")
    cld(0,4)
    e("s_lshl_b32 s8, s4, 13"); e(f"s_add_u32 s8, s8, {WS_FH}"); e("s_lshl_b32 s9, s3, 11"); e("s_add_u32 s9, s9, s8"); e("s_lshl_b32 s10, s5, 7"); e("s_add_u32 s9, s9, s10")
    e("s_lshl_b32 s10, s88, 12"); e("s_add_u32 s91, s8, s10"); e("s_lshl_b32 s10, s3, 9"); e("s_add_u32 s91, s91, s10")
    e("v_mov_b32 v9, v19")
    stamp(9)
    e("s_waitcnt vmcnt(8)"); stamp(14); flag_store(10,92,"s9"); cld(4,16); e("s_barrier")
    e(f"buffer_load_dword v8, v9, {S(92)}, s91 offen sc1")
    import k2; k2.gen(CR)
```

```python
from common import *
def gen(CR):
    stamp_mv(5)
    e("s_mov_b32 s5, s88"); e("s_mov_b32 s6, s89")
    e("s_lshl_b32 s8, s4, 18"); e("s_lshl_b32 s9, s5, 17"); e("s_add_u32 s8, s8, s9"); srd(56,54,131072,"s8")
    srd(68,16,2097152); srd(72,28,1024); srd(76,46,1024); srd(80,50,4194304)
    e("s_mul_i32 s13, s3, 18432"); e("v_lshl_add_u32 v4, v1, 4, s13")
    e("s_lshr_b32 s8, s3, 1"); e("s_xor_b32 s8, s8, s3"); e("s_and_b32 s8, s8, 1"); e("s_lshl_b32 s8, s8, 16"); e("v_xor_b32 v6, s8, v6"); e("v_xor_b32 v7, s8, v7")
    e("s_waitcnt vmcnt(0)"); flag_check(8,9,92,"s91","GH"); stamp(10)
    for ks in range(16):
        if ks%4==0 or ks>=7: e(f"s_mov_b32 s15, {1024*ks}")
        o=1024*(ks%4) if ks<7 else 0
        for mt in range(2):
            if ks<7: e(f"buffer_load_dwordx4 {V(8+8*ks+4*mt,4)}, v{6+mt}, {S(56)}, s15 offen offset:{o} sc1")
            else:
                e(f"s_add_u32 m0, s13, {((ks-7)*2+mt)*1024-o}"); e("s_nop 0")
                e(f"buffer_load_dwordx4 v{6+mt}, {S(56)}, s15 offen offset:{o} sc1 lds")
    ACC=64
    def mm(ks,h):
        for (mt,nt) in ((0,0),(0,1),(1,1),(1,0)):
            acc=V(ACC+16*(2*mt+nt),16)
            e(f"v_mfma_f32_32x32x16_bf16 {acc}, {V(h+4*mt,4)}, {V(CR(ks,nt),4)}, {'0' if ks==0 else acc}")
    for ks in range(7):
        e(f"s_waitcnt vmcnt({30-2*ks})"); mm(ks,8+8*ks)
    e("s_lshr_b32 s10, s3, 1"); e("s_lshl_b32 s8, s5, 1"); e("s_add_u32 s10, s10, s8")
    e("s_and_b32 s8, s3, 1"); e("s_lshl_b32 s8, s8, 5"); e("s_lshl_b32 s9, s6, 6"); e("s_add_u32 s8, s8, s9"); e("v_add_u32 v240, s8, v3")
    e("s_lshl_b32 s8, s4, 2"); e("s_add_u32 s8, s8, s10")
    e("s_and_b32 s11, s8, 32"); e("s_add_u32 s11, s11, s8"); e(f"s_lshl_b32 s11, s11, 5"); e(f"s_add_u32 s11, s11, {WS_Y}"); e("v_lshlrev_b32 v241, 12, v240"); e("v_lshl_add_u32 v241, v2, 4, v241")
    e(f"s_lshl_b32 s12, s8, 7"); e(f"s_add_u32 s12, s12, {WS_G}"); e("v_lshlrev_b32 v242, 6, v2")
    e("v_lshlrev_b32 v243, 1, v240")
    e("s_lshl_b32 s8, s4, 7"); e("s_lshl_b32 s9, s10, 1"); e("s_sub_u32 s8, s8, s9"); e("s_add_u32 s8, s8, 6")
    e("v_lshl_add_u32 v244, v2, 6, s8"); e("v_xor_b32 v245, 64, v244")
    e("v_lshl_add_u32 v244, v244, 10, v243"); e("v_lshl_add_u32 v245, v245, 10, v243")
    e("v_lshlrev_b32 v246, 1, v244"); e("v_lshlrev_b32 v247, 1, v245")
    for j in range(8): e(f"s_mov_b32 s{16+j}, {8192*j}"); e(f"s_mov_b32 s{24+j}, {16384*j}")
    X=192; Y=208; G=216; DA=232; DB=233
    def par(j): return ((j>>1)^(j>>2))&1
    epi=[f"buffer_load_dwordx4 {V(Y,4)}, v241, {S(92)}, s11 offen sc1", f"buffer_load_dwordx4 {V(Y+4,4)}, v241, {S(92)}, s11 offen offset:1024 sc1"]
    epi+=[f"buffer_load_dwordx4 {V(G+4*q,4)}, v242, {S(92)}, s12 offen offset:{16*q} sc1" for q in range(4)]
    epi+=[f"buffer_load_ushort v{DA}, v243, {S(72)}, 0 offen", f"buffer_load_ushort v{DB}, v243, {S(76)}, 0 offen"]
    for j in range(8):
        for r in range(2): epi.append(f"buffer_load_ushort v{X+2*j+r}, v{244+par(j)}, {S(68)}, s{16+j} offen offset:{1024*r}")
    e("s_lshr_b32 s14, s4, 3"); e("s_lshl_b32 s14, s14, 16"); e(f"s_add_u32 s14, s14, {WS_FY}"); e("v_lshlrev_b32 v234, 7, v240")
    pend=[f"buffer_load_dword v235, v234, {S(92)}, s14 offen sc1"]+epi[2:]
    ne=len(pend); iss=[0]
    def hrd(ks):
        e(f"s_waitcnt vmcnt({iss[0]+2*(15-ks)})")
        for mt in range(2): e(f"ds_read_b128 {V(8+8*((ks-7)%7)+4*mt,4)}, v4 offset:{((ks-7)*2+mt)*1024}")
    hrd(7); hrd(8)
    for ks in range(7,16):
        if ks+2<16: hrd(ks+2); e("s_waitcnt lgkmcnt(4)")
        else: e(f"s_waitcnt lgkmcnt({2*(15-ks)})")
        mm(ks,8+8*((ks-7)%7))
        if ks>=10:
            for _ in range(4):
                if pend: e(pend.pop(0)); iss[0]+=1
    assert not pend
    stamp(11)
    e(f"s_waitcnt vmcnt({ne-1})"); flag_check(235,234,92,"s14","GY"); e(epi[0]); e(epi[1]); stamp(15)
    for q in (1,2,3): e(f"s_xor_b32 s8, s3, {q}"); e("s_mul_i32 s8, s8, 18432"); e(f"v_lshl_add_u32 v{15+q}, v1, 4, s8")
    e("s_waitcnt vmcnt(2)")
    lab("GG_L"); e(f"v_xor_b32 v20, s{NON}, v{G+1}")
    for j in range(1,8): e(f"v_xor_b32 v21, s{NON}, v{G+2*j+1}"); e("v_or_b32 v20, v20, v21")
    e("v_cmp_ne_u32 vcc, 0, v20"); e("s_nop 4"); e("s_cbranch_vccz GG_OK")
    for x in epi[2:6]: e(x)
    e("s_waitcnt vmcnt(0)"); e("s_branch GG_L"); lab("GG_OK"); stamp(12)
    for j in range(8): e(f"v_and_b32 v{G+2*j+1}, 0xffff0000, v{G+2*j}"); e(f"v_lshlrev_b32 v{G+2*j}, 16, v{G+2*j}")
    PK[0]=1
    wr=[f"ds_write_b128 v4, {V(ACC+16*q+4*k,4)} offset:{q*4096+1024*k}" for q in (1,3,2) for k in range(4)]
    e(f"v_lshlrev_b32 v{DA}, 16, v{DA}"); e(f"v_lshlrev_b32 v{DB}, 16, v{DB}")
    for j in range(8):
        x=X+2*j; g=G+2*j
        for _ in range(2):
            if wr: e(wr.pop(0))
        if j==6:
            e("s_waitcnt lgkmcnt(0)"); e("s_barrier")
            for q in (1,2,3):
                for k in range(4): e(f"ds_read_b128 {V(ACC+16*q+4*k,4)}, v{15+q} offset:{q*4096+1024*k}")
        e(f"v_lshlrev_b32 v{x}, 16, v{x}"); e(f"v_lshlrev_b32 v{x+1}, 16, v{x+1}")
        e(f"v_pk_mul_f32 v[20:21], {V(x)}, {V(DA)} op_sel:[0,0] op_sel_hi:[1,0]"); e(f"v_pk_mul_f32 v[22:23], {V(x)}, {V(DA)} op_sel:[0,1] op_sel_hi:[1,1]")
        e("v_cvt_pk_bf16_f32 v20, v20, v21"); e("v_cvt_pk_bf16_f32 v22, v22, v23")
        e(f"v_and_b32 v{33+2*j}, 0xffff0000, v20"); e(f"v_lshlrev_b32 v{32+2*j}, 16, v20")
        e(f"v_and_b32 v23, 0xffff0000, v22"); e(f"v_lshlrev_b32 v22, 16, v22"); e(f"v_pk_add_f32 {V(ACC+2*j)}, {V(ACC+2*j)}, v[22:23]")
        e(f"v_sub_f32 v20, 1.0, v{g}"); e(f"v_sub_f32 v21, 1.0, v{g+1}"); e(f"v_cvt_pk_bf16_f32 v20, v20, v21")
        e(f"v_and_b32 v{x+1}, 0xffff0000, v20"); e(f"v_lshlrev_b32 v{x}, 16, v20")
    e("s_waitcnt vmcnt(0) lgkmcnt(0)")
    for j in range(8):
        a=ACC+2*j
        e(f"v_lshlrev_b32 v22, 16, v{Y+j}"); e(f"v_and_b32 v23, 0xffff0000, v{Y+j}")
        e(f"v_pk_add_f32 {V(a)}, {V(a)}, {V(a+16)}"); e(f"v_pk_add_f32 v[20:21], {V(32+2*j)}, v[22:23]"); e("v_cvt_pk_bf16_f32 v20, v20, v21")
        e(f"v_pk_add_f32 {V(a+32)}, {V(a+32)}, {V(a+48)}"); e("v_and_b32 v21, 0xffff0000, v20"); e("v_lshlrev_b32 v20, 16, v20")
        e(f"v_pk_mul_f32 v[20:21], v[20:21], {V(G+2*j)}"); e(f"v_pk_add_f32 {V(a)}, {V(a)}, {V(a+32)}"); e("v_cvt_pk_bf16_f32 v20, v20, v21")
        e(f"v_and_b32 v21, 0xffff0000, v20"); e(f"v_lshlrev_b32 v20, 16, v20")
        e(f"v_pk_fma_f32 {V(a)}, {V(a)}, {V(X+2*j)}, v[20:21]")
        for r in range(2): e(f"buffer_store_dword v{a+r}, v{246+par(j)}, {S(80)}, s{24+j} offen offset:{2048*r}")
    stamp_end(13,8<<20)
    e("s_endpgm")
```

```python
from common import *
UB=19360; BS=2208; TB=8704
def gen():
    lab("K1_CONV"); STV[0]=255; e("s_setprio 3")
    e("s_and_b32 s4, s2, 7"); e("s_lshl_b32 s4, s4, 5"); e("s_bfe_u32 s8, s2, 0x50003"); e("s_add_u32 s4, s4, s8")
    e("s_lshr_b32 s6, s3, 1"); e("s_and_b32 s7, s3, 1"); e("s_lshl_b32 s5, s4, 1"); e("s_add_u32 s5, s5, s6")
    e("s_lshl_b32 s8, s4, 9"); e("v_lshl_add_u32 v6, v0, 1, s8")
    e("s_lshl_b32 s8, s5, 1"); e("v_mov_b32 v7, s8")
    e("s_and_b32 s8, s4, 31"); e("s_lshl_b32 s8, s8, 16"); e("s_lshr_b32 s9, s4, 5"); e("s_lshl_b32 s9, s9, 7"); e("s_add_u32 s13, s8, s9")
    e("v_lshrrev_b32 v9, 5, v0"); e("v_lshlrev_b32 v8, 11, v3"); e("v_lshl_add_u32 v8, v9, 4, v8")
    e("s_waitcnt lgkmcnt(0)")
    srd(88,52,256)
    e("s_or_b32 s8, s2, s3"); e("s_cmp_lg_u32 s8, 0"); e("s_cbranch_scc1 G_NW")
    e(f"s_or_b32 s{NON}, s96, 1"); flag_store(14,88,"0")
    lab("G_NW")
    if os.environ.get("EXP")=="1": stamp_end(10,8<<20); e("s_endpgm")
    for i in range(4): srd(56+4*i,18+2*i,131072); e(f"buffer_load_ushort v{20+i}, v6, {S(56+4*i)}, 0 offen")
    srd(72,26,1024); e(f"buffer_load_ushort v24, v7, {S(72)}, 0 offen")
    srd(76,16,2097152)
    e(f"buffer_load_dwordx4 v[200:203], v8, {S(76)}, s13 offen"); e(f"buffer_load_dwordx4 v[204:207], v8, {S(76)}, s13 offen offset:1024")
    srd(92,54,WSSZ)
    nonce_issue(25,88); e("s_setprio 1" if os.environ.get("PR")=="1" else "s_setprio 0")
    e("s_andn2_b32 s8, s4, 31"); e("s_lshl_b32 s8, s8, 14"); e("s_and_b32 s9, s4, 31"); e("s_lshl_b32 s9, s9, 9"); e("s_add_u32 s13, s8, s9"); e(f"s_add_u32 s13, s13, {WS_XT}")
    e("v_lshlrev_b32 v8, 16, v9"); e("v_lshl_add_u32 v8, v3, 4, v8")
    e("s_mov_b32 s14, 0x05040100"); e("s_mov_b32 s15, 0x07060302")
    for c in range(4):
        e(f"v_add_u32 v14, {c}, v0"); e("v_lshrrev_b32 v15, 6, v14"); e("v_and_b32 v14, 63, v14")
        e(f"v_mul_u32_u24 v15, {BS}, v15"); e(f"v_lshl_add_u32 v{10+c}, v14, 2, v15")
    e("v_lshrrev_b32 v14, 2, v3"); e("v_and_b32 v15, 3, v3"); e("v_and_b32 v16, 3, v14")
    e("v_mul_u32_u24 v14, 272, v14"); e("v_lshl_add_u32 v14, v15, 2, v14"); e("v_cmp_lt_u32 vcc, v15, v16")
    for i in range(4): e(f"v_mov_b32 v{224+i}, 0")
    e("s_and_saveexec_b64 s[10:11], vcc"); e(f"ds_write_b32 v14, v224 offset:{UB+7*BS}"); e("s_mov_b64 exec, s[10:11]")
    e(f"s_mul_i32 s12, s3, {TB}"); e("v_lshl_add_u32 v16, v1, 2, s12")
    e("v_mul_u32_u24 v17, 272, v3"); e("v_lshl_add_u32 v17, v2, 4, v17"); e("v_add_u32 v17, s12, v17")
    stamp(1); e("s_waitcnt vmcnt(3)"); stamp(2); e("s_mov_b32 m0, s12")
    for r in range(20,25): e(f"v_lshlrev_b32 v{r}, 16, v{r}")
    expbf(24,24); expbf(20,20)
    e("v_mul_f32 v20, v20, v24"); e("v_mul_f32 v21, v21, v24")
    e(f"v_mul_f32 v20, {fl(-1.4426950408889634)}, v20"); e(f"v_mul_f32 v21, {INV2PI}, v21")
    e("v_add_f32 v24, v24, v24"); e("v_mul_f32 v22, v22, v24"); e("v_mul_f32 v23, v23, v24")
    Z8,Z16,Z1,Z2,Z4,Z256=26,28,30,32,34,36
    cexp(Z8,20,21,fl(8),18); cexp(Z16,20,21,fl(16),18)
    e("s_waitcnt vmcnt(0)"); nonce_check(25,88,"C")
    for k in range(4):
        t=228+4*k
        e(f"v_perm_b32 v{t}, v{204+k}, v{200+k}, s14"); e(f"v_mov_b32 v{t+1}, s{NON}"); e(f"v_perm_b32 v{t+2}, v{204+k}, v{200+k}, s15"); e(f"v_mov_b32 v{t+3}, s{NON}")
        e(f"buffer_store_dwordx4 {V(t,4)}, v8, {S(92)}, s13 offen sc1"); e("s_add_u32 s13, s13, 16384")
    stamp(7); e("v_lshlrev_b32 v9, 4, v0")
    tmp=[60]
    def put(row,r,neg):
        t=tmp[0]; tmp[0]=60+(t-59)%4
        e(f"v_cvt_pk_bf16_f32 v{t}, v{r}, {'-' if neg else ''}v{r+1}"); e(f"ds_write_addtid_b32 v{t} offset:{272*row}")
    e("v_mov_b32 v60, 0x3f80"); e("ds_write_addtid_b32 v60"); tmp[0]=61
    put(1,Z8,0); put(2,Z16,0)
    ev,od=Z16,Z8
    for c in range(3,32):
        if c%2: n=40+((c>>1)%2)*2; cmul(n,od,Z16); od=n
        else:   n=44+((c>>1)%2)*2; cmul(n,ev,Z16); ev=n
        put(c,n,0)
    GF=128; RF=160
    stamp(13)
    for s in range(8): e(f"ds_read_b128 {V(GF+4*s,4)}, v17 offset:{32*s}")
    e("s_lshl_b32 s98, s4, 14"); e(f"s_add_u32 s98, s98, {WS_XT}"); e("v_add_u32 v8, 8192, v9")
    def xtl():
        for q in range(4): e(f"buffer_load_dwordx4 {V(228+4*q,4)}, v{9 if q<2 else 8}, {S(92)}, s98 offen offset:{(q&1)*4096-(q&1)*16 if 0 else 0} sc1") if not (q&1) else e(f"buffer_load_dwordx4 {V(228+4*q,4)}, v{9 if q<2 else 8}, {S(92)}, s97 offen sc1")
    e("s_add_u32 s97, s98, 4096")
    cexp(Z1,20,21,"1.0",18); cexp(Z2,20,21,"2.0",18); cexp(Z4,20,21,"4.0",18); cexp(Z256,20,21,fl(256),18)
    def row(h,reg): return (reg&3)+4*h+8*(reg>>2)
    for k in range(1,8): cmul(64+2*k, 22 if k==1 else 62+2*k, Z256)
    e("s_waitcnt lgkmcnt(0)"); stamp(11)
    put(row(0,0),22,1); cmul(40,22,Z1); put(row(0,1),40,1)
    ev,od=22,40
    for j in range(2,8):
        if j%2: n=42 if od!=42 else 40; cmul(n,od,Z2); od=n
        else:   n=44 if ev!=44 else 46; cmul(n,ev,Z2); ev=n
        put(row(0,j),n,1)
    put(row(0,8),66,1); cmul(40,66,Z2); put(row(0,9),40,1); cmul(42,66,Z4); put(row(0,10),42,1)
    cmul(44,40,Z4); put(row(0,11),44,1); cmul(46,66,Z8); put(row(0,12),46,1)
    for (h,r0,b) in ((0,13,68),(1,0,70)):
        put(row(h,r0),b,1); cmul(40,b,Z4); put(row(h,r0+1),40,1); cmul(42,b,Z8); put(row(h,r0+2),42,1)
    for k in range(4):
        put(row(1,3+2*k),72+2*k,1); cmul(44+2*(k%2),72+2*k,Z8); put(row(1,4+2*k),44+2*(k%2),1)
    for s in range(8): e(f"ds_read_b128 {V(RF+4*s,4)}, v17 offset:{32*s}")
    D=64; stamp(3)
    if os.environ.get("EXP2"): stamp_end(10,8<<20); e("s_endpgm")
    for s in range(8):
        e(f"s_waitcnt lgkmcnt({7-s})")
        e(f"v_mfma_f32_32x32x16_bf16 {V(D,16)}, {V(RF+4*s,4)}, {V(GF+4*s,4)}, {'0' if s==0 else V(D,16)}")
    e("s_waitcnt vmcnt(0)"); xtl()
    srd(80,40,524288); srd(84,42,524288); srd(72,48,1024)
    e("s_lshr_b32 s8, s4, 4"); e("s_lshl_b32 s8, s8, 15"); e("s_and_b32 s9, s4, 15"); e("s_lshl_b32 s9, s9, 6"); e("s_add_u32 s8, s8, s9")
    e("s_lshl_b32 s9, s3, 4"); e("s_add_u32 s8, s8, s9")
    e("v_lshlrev_b32 v14, 10, v3"); e("v_lshl_add_u32 v14, v2, 3, v14")
    e(f"buffer_load_dwordx2 v[208:209], v14, {S(80)}, s8 offen"); e(f"buffer_load_dwordx2 v[210:211], v14, {S(84)}, s8 offen")
    e("s_lshl_b32 s8, s4, 13"); e("s_lshl_b32 s9, s3, 11"); e("s_add_u32 s8, s8, s9"); e("v_lshlrev_b32 v14, 4, v1")
    e(f"buffer_load_dwordx4 v[212:215], v14, {S(76)}, s8 offen"); e(f"buffer_load_dwordx4 v[216:219], v14, {S(76)}, s8 offen offset:1024")
    e(f"buffer_load_dwordx4 v[220:223], v14, {S(72)}, 0 offen")
    stamp(12)
    def uput(q):
        for c in range(4):
            e(f"ds_write_b32 v{10+c}, v{228+4*q} offset:{UB+(7+4*q)*BS+272*c}"); e(f"ds_write_b32 v{10+c}, v{230+4*q} offset:{UB+(7+4*q)*BS+272*(4+c)}")
    e("v_lshl_add_u32 v16, v1, 4, s12"); e("s_xor_b32 s13, s3, 1"); e(f"s_mul_i32 s13, s13, {TB}"); e("v_lshl_add_u32 v17, v1, 4, s13")
    e("s_nop 7")
    for k in range(4): e(f"ds_write_b128 v16, {V(D+4*k,4)} offset:{1024*k}")
    e("s_waitcnt lgkmcnt(0)"); e("s_barrier")
    for k in range(4): e(f"ds_read_b128 {V(80+4*k,4)}, v17 offset:{1024*k}")
    e("s_waitcnt lgkmcnt(0)"); e("s_barrier")
    for k in range(8): e(f"v_pk_add_f32 {V(D+2*k)}, {V(D+2*k)}, {V(80+2*k)}")
    e("v_lshlrev_b32 v16, 4, v0")
    for k in range(3): e(f"ds_write_b128 v16, v[224:227] offset:{UB+4096*k}")
    e("v_min_u32 v16, 3152, v16"); e(f"ds_write_b128 v16, v[224:227] offset:{UB+12288}")
    e("s_mul_i32 s12, s6, 8960"); e("s_mul_i32 s13, s7, 4480"); e("s_add_u32 s13, s13, s12")
    e("v_and_b32 v16, 15, v1"); e("v_lshl_add_u32 v16, v16, 4, s13"); e("ds_write_b128 v16, v[224:227] offset:4096")
    e("v_sub_u32 v16, 31, v3"); e("v_lshl_add_u32 v16, v16, 4, s13")
    e("v_and_b32 v17, 1, v1"); e("v_cmp_eq_u32 vcc, 1, v17"); e("s_nop 1")
    def chunk(kb,el,r):
        for q in range(4):
            hi=6+r-2*q
            e(f"v_cvt_pk_bf16_f32 v{80+q}, v{el[hi]}, v{el[hi-1]}")
        e(f"ds_write_b128 v16, v[80:83] offset:{512*(7-kb)}"); e("s_nop 0")
    def els(lst,prev):
        d={i:x for i,x in enumerate(lst)}; d[-1]=prev; return d
    def r2(b): return els([b,b,b,b+1,b+1,b+1,b+2,b+2],b)
    for k in range(4): e(f"v_cndmask_b32 v{84+k}, v{D+3+2*k}, v{D+4+2*k}, vcc")
    e("s_cmp_eq_u32 s7, 0"); e("s_cbranch_scc1 C_R0")
    for r in (1,0):
        if r==0: lab("C_R0")
        e("s_mov_b32 exec_hi, 0")
        chunk(0,els([D+i for i in range(8)],224),r)
        chunk(1,els([D+8,D+8,D+9,D+10,D+10,D+10,D+11,D+12],D+8),r)
        chunk(2,r2(D+13),r)
        if r==0:
            e(f"v_cvt_pk_bf16_f32 v80, v{D+7}, v{D+7}"); e(f"ds_write_b16 v16, v80 offset:{512*7-2}")
        e("s_mov_b32 exec_hi, -1"); e("s_mov_b32 exec_lo, 0")
        chunk(3,r2(D),r)
        for k in range(4):
            a=D+3+2*k; chunk(4+k,els([a,a,a,a,84+k,a+1,a+1,a+1],a),r)
        e("s_mov_b32 exec_lo, -1")
        if r==1: e("s_branch C_RD")
    lab("C_RD")
    stamp(4)
    stamp(5); e("s_waitcnt vmcnt(0)")
    e("v_perm_b32 v244, v210, v208, s14"); e("v_perm_b32 v245, v210, v208, s15"); e("v_perm_b32 v246, v211, v209, s14"); e("v_perm_b32 v247, v211, v209, s15")
    e("s_lshl_b32 s8, s4, 12"); e(f"s_add_u32 s8, s8, {WS_C}"); e("v_lshlrev_b32 v9, 4, v0")
    e(f"buffer_store_dwordx4 v[244:247], v9, {S(92)}, s8 offen sc1")
    lab("C_XL")
    e(f"v_xor_b32 v18, s{NON}, v229")
    for r in range(231,244,2): e(f"v_xor_b32 v19, s{NON}, v{r}"); e("v_or_b32 v18, v18, v19")
    e("v_cmp_ne_u32 vcc, 0, v18"); e("s_nop 4"); e("s_cbranch_vccz C_XOK")
    e("s_sleep 8"); xtl(); e("s_waitcnt vmcnt(0)"); e("s_branch C_XL")
    lab("C_XOK"); stamp(6)
    for q in range(4): uput(q)
    e("s_lshl_b32 s8, s4, 9"); e("s_lshl_b32 s9, s3, 7"); e("s_add_u32 s8, s8, s9"); e(f"s_add_u32 s8, s8, {WS_FC}")
    e("s_waitcnt vmcnt(0)"); flag_store(18,92,"s8")
    e("v_lshl_or_b32 v18, v5, 3, v4"); e("v_sub_u32 v18, v2, v18"); e("v_add_u32 v18, 15, v18"); e("v_and_b32 v19, 1, v1"); e("v_mul_u32_u24 v19, 4480, v19")
    e("v_lshl_add_u32 v20, v18, 4, v19"); e("s_xor_b32 s9, s7, 1"); e("s_lshl_b32 s8, s9, 10"); e("s_add_u32 s8, s8, s12"); e("v_add_u32 v20, s8, v20")
    e("v_and_b32 v18, 3, v1"); e("v_bfe_u32 v19, v1, 3, 1"); e("v_lshl_or_b32 v22, v19, 2, v18")
    e("v_bfe_u32 v19, v1, 4, 1"); e("v_lshl_or_b32 v23, v5, 1, v19")
    e(f"v_mul_u32_u24 v18, {BS}, v22"); e("v_mul_u32_u24 v19, 272, v23"); e("v_add_u32 v18, v18, v19"); e("v_lshl_add_u32 v21, v2, 4, v18")
    e(f"s_mul_i32 s8, s9, {4*BS}"); e("s_mul_i32 s9, s6, 1088"); e("s_add_u32 s8, s8, s9"); e("v_add_u32 v21, s8, v21")
    e("s_waitcnt lgkmcnt(0)"); e("s_barrier")
    stamp(8); e("s_setprio 0"); T0,T1,F=64,80,96; NB=3
    def rd(s):
        if s>=32: return []
        f=F+16*(s%NB); ob=UB+(3-(s>>3))*BS+224-32*(s&7)
        return [f"ds_read_b128 {V(f,4)}, v20 offset:{3040-32*s}", f"ds_read_b128 {V(f+4,4)}, v21 offset:{ob}",
                f"ds_read_b128 {V(f+8,4)}, v21 offset:{ob+8*BS}", f"ds_read_b128 {V(f+12,4)}, v20 offset:{992-32*s}"]
    for x in rd(0)+rd(1): e(x)
    for s in range(32):
        f=F+16*(s%NB); r=rd(s+2)
        e(f"s_waitcnt lgkmcnt({4 if s<31 else 0})")
        e(f"v_mfma_f32_32x32x16_bf16 {V(T0,16)}, {V(f,4)}, {V(f+4,4)}, {'0' if s==0 else V(T0,16)}")
        for x in r[:2]: e(x)
        e(f"v_mfma_f32_32x32x16_bf16 {V(T1,16)}, {V(f,4)}, {V(f+8,4)}, {'0' if s==0 else V(T1,16)}")
        for x in r[2:3]: e(x)
        e(f"v_mfma_f32_32x32x16_bf16 {V(T1,16)}, {V(f+12,4)}, {V(f+4,4)}, {V(T1,16)}")
        for x in r[3:]: e(x)
    stamp(9); e("s_barrier")
    e("s_lshl_b32 s8, s3, 12"); e("v_lshl_add_u32 v16, v1, 4, s8"); e("v_xor_b32 v17, 4096, v16")
    e("s_lshl_b32 s8, s5, 12"); e("s_lshl_b32 s9, s7, 11"); e("s_add_u32 s8, s8, s9"); e(f"s_add_u32 s8, s8, {WS_Y}")
    e("v_lshl_or_b32 v18, v22, 2, v23"); e("v_lshl_or_b32 v18, v18, 1, v2"); e("v_lshlrev_b32 v18, 4, v18")
    e("s_nop 3"); e("s_cmp_eq_u32 s7, 0"); e("s_cbranch_scc1 C_F0")
    for ww in (1,0):
        if ww==0: lab("C_F0")
        keep,send=(T1,T0) if ww else (T0,T1)
        for k in range(4): e(f"ds_write_b128 v16, {V(send+4*k,4)} offset:{1024*k}")
        e("s_waitcnt lgkmcnt(0)"); e("s_barrier")
        for k in range(4): e(f"ds_read_b128 {V(96+4*k,4)}, v17 offset:{1024*k}")
        e("s_waitcnt lgkmcnt(0)")
        for k in range(8):
            e(f"v_pk_add_f32 {V(96+2*k)}, {V(96+2*k)}, {V(keep+2*k)}"); e(f"v_cvt_pk_bf16_f32 v{112+k}, v{96+2*k}, v{97+2*k}")
        e(f"buffer_store_dwordx4 v[112:115], v18, {S(92)}, s8 offen sc1"); e(f"buffer_store_dwordx4 v[116:119], v18, {S(92)}, s8 offen offset:1024 sc1")
        if ww: e("s_branch C_FD")
    lab("C_FD")
    for rr in range(2):
        for i in range(4):
            x=212+4*rr+i
            e(f"v_lshlrev_b32 v84, 16, v{x}"); e(f"v_and_b32 v85, 0xffff0000, v{x}")
            e(f"v_lshlrev_b32 v86, 16, v{220+i}"); e(f"v_and_b32 v87, 0xffff0000, v{220+i}")
            e("v_pk_mul_f32 v[84:85], v[84:85], v[86:87]"); e("v_cvt_pk_bf16_f32 v84, v84, v85")
            e("v_and_b32 v85, 0xffff0000, v84"); e("v_lshlrev_b32 v84, 16, v84")
            if i==0: e(f"v_add_f32 v{88+rr}, v84, v85")
            else: e(f"v_add_f32 v{88+rr}, v{88+rr}, v84"); e(f"v_add_f32 v{88+rr}, v{88+rr}, v85")
    for md in ("row_shr:1","row_shr:2","row_shr:4","row_shr:8","row_bcast:15 row_mask:0xa","row_bcast:31 row_mask:0xc"):
        e("s_nop 0")
        for rr in range(2): e(f"v_add_f32_dpp v{88+rr}, v{88+rr}, v{88+rr} {md}")
    for rr in range(2):
        bfr(88+rr,88+rr); e(f"v_mul_f32 v{88+rr}, {fl(-1.4426950408889634)}, v{88+rr}"); e(f"v_exp_f32 v{88+rr}, v{88+rr}"); e("s_nop 0")
        e(f"v_add_f32 v{88+rr}, 1.0, v{88+rr}"); e(f"v_rcp_f32 v{88+rr}, v{88+rr}"); e("s_nop 0")
    e("v_cvt_pk_bf16_f32 v88, v88, v89"); e(f"v_mov_b32 v89, s{NON}")
    e("s_lshr_b32 s8, s4, 3"); e("s_lshr_b32 s9, s4, 1"); e("s_xor_b32 s8, s8, s9"); e("s_lshr_b32 s9, s4, 2"); e("s_xor_b32 s8, s8, s9"); e("s_and_b32 s8, s8, 1"); e("s_lshl_b32 s8, s8, 6")
    e("s_and_b32 s9, s4, 7"); e("s_lshl_b32 s9, s9, 3"); e("s_add_u32 s8, s8, s9")
    e("s_lshr_b32 s9, s4, 4"); e("s_lshl_b32 s9, s9, 9"); e("s_add_u32 s8, s8, s9")
    e("s_sub_u32 s9, 3, s3"); e("s_lshl_b32 s9, s9, 7"); e("s_add_u32 s8, s8, s9"); e(f"s_add_u32 s8, s8, {WS_G}")
    e("v_cmp_eq_u32 vcc, 63, v1"); e("v_mov_b32 v18, 0x7ffffff0"); e("s_nop 0"); e("v_cndmask_b32 v18, v18, v224, vcc")
    e(f"buffer_store_dwordx2 v[88:89], v18, {S(92)}, s8 offen sc1")
    e("s_lshl_b32 s8, s5, 7"); e("s_lshl_b32 s9, s7, 16"); e("s_add_u32 s8, s8, s9"); e(f"s_add_u32 s8, s8, {WS_FY}"); e("s_waitcnt vmcnt(1)"); flag_store(18,92,"s8")
    stamp_end(10,8<<20); e("s_endpgm")
```

```python
from common import *
def gen():
    lab("K1_GEMM"); stamp_mv(63)
    e("s_and_b32 s6, s2, 7"); e("s_bfe_u32 s7, s2, 0x50003")
    e("s_lshr_b32 s4, s6, 1"); e("s_lshl_b32 s4, s4, 2"); e("s_and_b32 s8, s7, 3"); e("s_add_u32 s4, s4, s8")
    e("s_and_b32 s5, s6, 1"); e("s_lshl_b32 s5, s5, 3"); e("s_lshr_b32 s8, s7, 2"); e("s_add_u32 s5, s5, s8")
    e("s_bfe_u32 s88, s7, 0x10002"); e("s_and_b32 s89, s6, 1"); e("s_lshl_b32 s89, s89, 2"); e("s_lshr_b32 s9, s7, 3"); e("s_add_u32 s89, s89, s9")
    e("s_and_b32 s90, s7, 3"); e("s_lshl_b32 s90, s90, 1"); e("s_add_u32 s90, s90, s8"); e("s_lshl_b32 s90, s90, 7")
    e("v_lshrrev_b32 v6, 3, v1"); e("v_and_b32 v7, 7, v1")
    e("v_bfe_u32 v8, v6, 1, 1")
    e("v_xor_b32 v7, v7, v8")
    e("v_and_b32 v9, 1, v6"); e("v_lshl_or_b32 v9, v9, 3, v8")
    e("v_lshrrev_b32 v10, 2, v6"); e("v_lshl_or_b32 v9, v10, 4, v9")
    e("s_lshl_b32 s8, s3, 5"); e("v_add_u32 v9, s8, v9")
    for q in range(4):
        e(f"v_xor_b32 v10, {2*q}, v7"); e(f"v_lshlrev_b32 v10, 4, v10")
        e(f"v_add_u32 v11, {2*q}, v9"); e(f"v_lshl_add_u32 v{12+q}, v11, 10, v10")
    e("s_and_b32 s8, s3, 1"); e("s_lshl_b32 s9, s8, 2"); e("s_lshl_b32 s8, s8, 4")
    for qq in range(2):
        e(f"v_xor_b32 v10, s9, v7"); e(f"v_xor_b32 v10, {2*qq}, v10"); e("v_lshlrev_b32 v10, 4, v10")
        e(f"v_add3_u32 v11, s8, v6, {8*qq}"); e(f"v_lshl_add_u32 v{16+qq}, v11, 10, v10")
    e("s_waitcnt lgkmcnt(0)")
    if os.environ.get("EXP")=="3": stamp_end(6,8<<20); e("s_endpgm")
    e("s_lshl_b32 s8, s4, 17"); srd(56,16,131072,"s8")
    e("s_cmp_lt_u32 s3, 2"); e("s_cselect_b32 s10, s36, s38"); e("s_cselect_b32 s11, s37, s39")
    e("s_lshl_b32 s8, s5, 15"); srd(60,10,32768,"s8")
    srd(64,32,1024); srd(68,34,1024); srd(72,44,1024)
    e("s_lshl_b32 s8, s5, 13"); e(f"s_add_u32 s8, s8, {WS_E}"); srd(76,54,8192,"s8")
    srd(80,52,256)
    e("s_lshl_b32 s8, s4, 18"); srd(84,54,262144,"s8")
    e("s_lshl_b32 s8, s5, 6"); e("v_lshl_add_u32 v10, v3, 1, s8")
    e(f"buffer_load_ushort v20, v10, {S(64)}, 0 offen"); e(f"buffer_load_ushort v21, v10, {S(68)}, 0 offen"); e(f"buffer_load_ushort v22, v10, {S(72)}, 0 offen")
    e("s_lshl_b32 s8, s4, 9"); e("v_lshl_add_u32 v18, v3, 4, s8"); e("v_mov_b32 v10, 0x7ffffff0")
    e("v_cmp_lt_u32 vcc, 223, v0"); e("v_mov_b32 v24, 0"); e("v_mov_b32 v25, 0"); e("v_cndmask_b32 v18, v10, v18, vcc")
    e("v_mov_b32 v26, 0"); e("v_mov_b32 v27, 0")
    srd(92,54,WSSZ)
    e("s_lshl_b32 s13, s3, 12"); e("s_lshl_b32 s14, s3, 11"); e("s_add_u32 s14, s14, 16384")
    def dma(st):
        b=(st%3)*24576
        e(f"s_add_u32 s15, s90, {128*st}"); e("s_and_b32 s15, s15, 1023")
        for q in range(4):
            e(f"s_add_u32 m0, s13, {b+1024*q}"); e("s_nop 0"); e(f"buffer_load_dwordx4 v{12+q}, {S(56)}, s15 offen lds")
        for q in range(2):
            e(f"s_add_u32 m0, s14, {b+1024*q}"); e("s_nop 0"); e(f"buffer_load_dwordx4 v{16+q}, {S(60)}, s15 offen lds")
    for st in range(2): dma(st)
    if os.environ.get("PR")!="1": e("s_setprio 3")
    for s in range(4):
        e(f"v_or_b32 v10, {2*s}, v2"); e("v_xor_b32 v10, v10, v4"); e("v_lshlrev_b32 v10, 4, v10")
        e(f"v_lshl_add_u32 v{28+s}, v3, 7, v10"); e(f"v_add_u32 v{32+s}, s13, v{28+s}"); e(f"v_add_u32 v{28+s}, 16384, v{28+s}")
    n0=len(L)
    for r in (20,21,22): e(f"v_lshlrev_b32 v{r}, 16, v{r}")
    expbf(22,22)
    e("v_mul_f32 v36, v22, v20"); e("v_mul_f32 v37, v22, v21")
    e(f"v_mul_f32 v36, {LOG2E}, v36"); e(f"v_mul_f32 v37, {INV2PI}, v37")
    cexp(40,36,37,"1.0",38); cexp(42,36,37,fl(8),38); cexp(8,36,37,fl(16),38);
    e("s_lshl_b32 s8, s3, 2"); e("s_sub_u32 s8, 15, s8"); e("v_sub_u32 v10, s8, v2"); e("v_lshlrev_b32 v10, 7, v10"); e("v_cvt_f32_u32 v10, v10")
    cexp(44,36,37,"v10",38); e(f"v_add_f32 v10, {fl(-256)}, v10"); cexp(46,36,37,"v10",38)
    e("v_lshrrev_b32 v10, 5, v0"); e("v_lshlrev_b32 v10, 4, v10"); e("v_cvt_f32_u32 v10, v10")
    cexp(48,36,37,"v10",38)
    e("v_mul_f32 v38, v20, v20"); e("v_fmac_f32 v38, v21, v21"); e("v_rcp_f32 v38, v38")
    e("v_add_f32 v52, -1.0, v40"); e("v_mov_b32 v53, v41"); e("v_add_f32 v38, v38, v38")
    e("v_mul_f32 v54, v20, v38"); e("v_mul_f32 v55, v21, v38"); e("v_sub_f32 v55, 0, v55")
    cmul(50,52,54)
    RE=64; IM=80; FR=96
    e("v_bfe_u32 v19, v1, 2, 1"); e("v_and_b32 v10, 3, v1"); e("v_lshlrev_b32 v10, 7, v10"); e("v_lshl_add_u32 v19, v19, 11, v10")
    e("v_bfe_u32 v57, v1, 4, 1"); e("v_and_b32 v10, 15, v1"); e("v_lshlrev_b32 v10, 7, v10"); e("v_lshl_add_u32 v57, v57, 13, v10")
    e("s_lshl_b32 s91, s89, 14"); e("s_lshl_b32 s8, s3, 11"); e("s_add_u32 s91, s91, s8"); e(f"s_add_u32 s91, s91, {WS_FC}")
    e("s_lshl_b32 s8, s89, 17"); e(f"s_add_u32 s8, s8, {WS_C}"); srd(64,54,131072,"s8")
    e("s_lshl_b32 s8, s3, 14"); e("v_lshl_add_u32 v6, v1, 4, s8"); e("s_and_b32 s8, s3, 1"); e("s_lshl_b32 s8, s8, 16"); e("v_add_u32 v6, s8, v6"); e("v_xor_b32 v7, 0x10000, v6")
    coefs=L[n0:]; del L[n0:]
    def CR(ks,nt): return (192 if ks<8 else 128-64)+8*ks+4*nt
    def cld(k0,k1):
        for ks in range(k0,k1):
            if ks%4==0: e(f"s_mov_b32 s15, {1024*ks}")
            for nt in range(2): e(f"buffer_load_dwordx4 {V(CR(ks,nt),4)}, v{6+nt}, {S(64)}, s15 offen offset:{1024*(ks%4)} sc1")
    def rds(k,s):
        b=(k%3)*24576; f=FR+48*(k%2)+12*s
        return [f"ds_read_b128 {V(f,4)}, v{32+s} offset:{b}", f"ds_read_b128 {V(f+4,4)}, v{28+s} offset:{b}", f"ds_read_b128 {V(f+8,4)}, v{28+s} offset:{b+4096}"]
    stamp(1); e("s_waitcnt vmcnt(6)"); e("s_barrier"); stamp(3)
    for s in range(4):
        for x in rds(0,s): e(x)
    dma(2)
    waits=[6,6,6,7,6,6,0,None]
    for k in range(8):
        if k<7: e(f"s_waitcnt vmcnt({waits[k]}) lgkmcnt(0)"); e("s_barrier")
        else: e("s_waitcnt lgkmcnt(0)")
        if k in (2,6): stamp({2:4,6:5}[k])
        fill=[]
        if k<7:
            for s in range(4): fill.append(rds(k+1,s))
        n0=len(L)
        if k+3<8: dma(k+3)
        dl=L[n0:]; del L[n0:]
        dg=[dl[:5]]+[dl[5+3*i:8+3*i] for i in range(5)] if dl else []
        i=0
        for s in range(4):
            for (acc,o) in ((RE,4),(IM,8)):
                f=FR+48*(k%2)+12*s
                c="0" if (k==0 and s==0) else V(acc,16)
                e(f"v_mfma_f32_32x32x16_bf16 {V(acc,16)}, {V(f,4)}, {V(f+o,4)}, {c}")
                if i<len(dg): L.extend(dg[i])
                if i>=1 and i-1<len(fill):
                    for x in fill[i-1]: e(x)
                if k>=5:
                    L.extend(coefs[:6]); del coefs[:6]
                i+=1
        if k==2: nonce_issue(62,80)
        if k==4: nonce_check(62,80,"G"); e("s_setprio 3")
    assert not coefs, len(coefs)
    if os.environ.get("EXP") in ("1","2"): stamp_end(6,8<<20); e("s_endpgm")
    EB=49152
    e("s_nop 1"); e("v_lshlrev_b32 v56, 4, v0"); e(f"ds_write_b128 v56, v[24:27] offset:{EB}")
    e("v_lshrrev_b32 v56, 5, v0"); e("v_lshlrev_b32 v56, 8, v56"); e("v_lshl_add_u32 v56, v3, 3, v56")
    e("s_nop 7")
    def step(dr,di,pr,pi,t):
        e(f"v_pk_fma_f32 {V(dr)}, {V(40)}, {V(pr)}, {V(RE+2*t)} op_sel:[0,0,0] op_sel_hi:[0,1,1]")
        e(f"v_pk_fma_f32 {V(di)}, {V(40)}, {V(pi)}, {V(IM+2*t)} op_sel:[0,0,0] op_sel_hi:[0,1,1]")
        e(f"v_pk_fma_f32 {V(dr)}, {V(40)}, {V(pi)}, {V(dr)} op_sel:[1,0,0] op_sel_hi:[1,1,1] neg_lo:[1,0,0] neg_hi:[1,0,0]")
        e(f"v_pk_fma_f32 {V(di)}, {V(40)}, {V(pr)}, {V(di)} op_sel:[1,0,0] op_sel_hi:[1,1,1]")
    pr,pi=RE,IM
    for t in range(1,8):
        dr,di=(96,98) if t%2 else (100,102)
        step(dr,di,pr,pi,t); pr,pi=dr,di
    e("v_mov_b32 v58, v96"); e("v_mov_b32 v59, v98"); e("v_mov_b32 v60, v97"); e("v_mov_b32 v61, v99")
    cfma(60,42,58,60)
    e(f"ds_write_b64 v56, v[60:61] offset:{EB+4096}")
    e("s_waitcnt lgkmcnt(0)"); e("s_barrier")
    for j in range(7): e(f"ds_read_b64 {V(110+2*j)}, v56 offset:{EB+4096-7*256+256*j}")
    for j in range(1,7):
        e(f"s_waitcnt lgkmcnt({6-j})"); cfma(110+2*j,8,110+2*j-2,110+2*j)
    cfma(60,8,122,60)
    e("v_mov_b32 v24, v60"); e(f"v_mov_b32 v25, s{NON}"); e("v_mov_b32 v26, v61"); e(f"v_mov_b32 v27, s{NON}")
    e(f"buffer_store_dwordx4 v[24:27], v18, {S(76)}, 0 offen sc1")
    stamp(6); cfma(58,42,122,58)
    e("s_lshl_b32 s8, s4, 9"); e("s_lshl_b32 s9, s3, 11"); e("s_add_u32 s8, s8, s9"); e("s_sub_u32 s8, s8, 8192"); e("v_lshl_add_u32 v12, v1, 4, s8"); e("v_add_u32 v13, 1024, v12")
    G=128
    def gl():
        for j in range(2): e(f"buffer_load_dwordx4 {V(G+4*j,4)}, v{12+j}, {S(76)}, 0 offen sc1")
    for t in range(8):
        e(f"v_pk_mul_f32 {V(96)}, {V(50)}, {V(IM+2*t)} op_sel:[1,0] op_sel_hi:[1,1]")
        e(f"v_pk_mul_f32 {V(IM+2*t)}, {V(50)}, {V(IM+2*t)} op_sel:[0,0] op_sel_hi:[0,1]")
        e(f"v_pk_fma_f32 {V(IM+2*t)}, {V(50)}, {V(RE+2*t)}, {V(IM+2*t)} op_sel:[1,0,0] op_sel_hi:[1,1,1]")
        e(f"v_pk_fma_f32 {V(RE+2*t)}, {V(50)}, {V(RE+2*t)}, {V(96)} op_sel:[0,0,0] op_sel_hi:[0,1,1] neg_lo:[0,0,1] neg_hi:[0,0,1]")
    e("v_lshlrev_b32 v14, 3, v0"); e("v_lshlrev_b32 v15, 3, v3")
    gl()
    lab("G_POLL")
    e("s_waitcnt vmcnt(0)")
    e("v_mov_b32 v10, 0")
    for j in range(2):
        e(f"v_ashrrev_i32 v11, 31, v{12+j}"); e(f"v_xor_b32 v{G+4*j+1}, s{NON}, v{G+4*j+1}"); e(f"v_xor_b32 v{G+4*j+3}, s{NON}, v{G+4*j+3}")
        e(f"v_or_b32 v{G+4*j+1}, v{G+4*j+1}, v{G+4*j+3}"); e(f"v_bfi_b32 v11, v11, 0, v{G+4*j+1}"); e("v_or_b32 v10, v10, v11")
    e("v_cmp_ne_u32 vcc, 0, v10"); e("s_nop 4"); e("s_cbranch_vccz G_POLL_OK")
    gl(); e("s_branch G_POLL")
    lab("G_POLL_OK"); stamp(8)
    for j in range(2): e(f"v_mov_b32 v{G+4*j+1}, v{G+4*j+2}")
    cmul(96,44,G); cfma(96,46,G+4,96)
    e(f"ds_write_b64 v14, v[96:97] offset:{EB+8192}"); e("s_waitcnt lgkmcnt(0)"); e("s_barrier"); stamp(7)
    e(f"buffer_load_dword v23, v57, {S(92)}, s91 offen sc1")
    for j in range(8): e(f"ds_read_b64 {V(G+2*j)}, v15 offset:{EB+8192+256*j}")
    e("s_waitcnt lgkmcnt(0)")
    for st in (8,4,2):
        for j in range(0,st,2): e(f"v_pk_add_f32 {V(G+j)}, {V(G+j)}, {V(G+j+st)}")
    HX=G
    cmul(98,48,HX)
    e(f"v_pk_add_f32 {V(122)}, {V(122)}, {V(98)}")
    cfma(58,42,98,58)
    cmul(100,50,122); cmul(102,50,58)
    e("v_mov_b32 v96, v100"); e("v_mov_b32 v97, v102"); e("v_mov_b32 v98, v101"); e("v_mov_b32 v99, v103")
    e("v_lshrrev_b32 v56, 5, v0"); e("v_mul_u32_u24 v56, 2304, v56"); e("v_lshl_add_u32 v56, v3, 2, v56")
    pr,pi=96,98
    for t in range(8):
        dr,di=(104,106) if t%2==0 else (108,110)
        step(dr,di,pr,pi,t); pr,pi=dr,di
        e(f"v_cvt_pk_bf16_f32 v{112+2*(t%2)}, v{dr}, -v{di}"); e(f"v_cvt_pk_bf16_f32 v{113+2*(t%2)}, v{dr+1}, -v{di+1}")
        e(f"ds_write_b32 v56, v{112+2*(t%2)} offset:{144*t}"); e(f"ds_write_b32 v56, v{113+2*(t%2)} offset:{144*(t+8)}")
    e("v_lshl_or_b32 v10, v5, 3, v4"); e("v_and_b32 v11, 1, v1"); e("v_lshl_add_u32 v10, v10, 3, v11")
    e("s_lshl_b32 s8, s3, 1"); e("s_sub_u32 s8, 6, s8"); e("v_add_u32 v10, s8, v10")
    e("v_mul_u32_u24 v10, 144, v10"); e("v_lshl_add_u32 v10, v2, 4, v10")
    e("s_lshl_b32 s8, s3, 16"); e("s_lshl_b32 s9, s5, 12"); e("s_add_u32 s8, s8, s9"); e("v_lshlrev_b32 v11, 4, v1")
    e("s_waitcnt lgkmcnt(0)"); e("s_barrier")
    for k in range(4): e(f"ds_read_b128 {V(96+4*k,4)}, v10 offset:{32*k}")
    for k in range(4):
        e(f"s_waitcnt lgkmcnt({3-k})"); e(f"buffer_store_dwordx4 {V(96+4*k,4)}, v11, {S(84)}, s8 offen offset:{1024*k} sc1")
    e("s_lshl_b32 s8, s4, 13"); e(f"s_add_u32 s8, s8, {WS_FH}"); e("s_lshl_b32 s9, s3, 11"); e("s_add_u32 s9, s9, s8"); e("s_lshl_b32 s10, s5, 7"); e("s_add_u32 s9, s9, s10")
    e("s_lshl_b32 s10, s88, 12"); e("s_add_u32 s90, s8, s10"); e("s_lshl_b32 s10, s3, 9"); e("s_add_u32 s90, s90, s10")
    e("v_mov_b32 v9, v19")
    stamp(9)
    e("s_waitcnt vmcnt(0)"); stamp(14); flag_store(10,92,"s9"); flag_check(23,57,92,"s91","GC"); cld(0,16); e("s_barrier"); e("s_mov_b32 s91, s90")
    e(f"buffer_load_dword v8, v9, {S(92)}, s91 offen sc1")
    import k2; k2.gen(CR)
```

```python
import sys
from common import *
import k1gemm, k1conv, k2
N="gated_mix__ssm_conv_s4d__ssm_conv_s5__prompt"
hdr=[l for l in open(f"cdna_kernels/{N}.s.ref").read().split("\n") if l.startswith(";") and "@launch" not in l and "Override" not in l and "grid=ceil" not in l]
L.extend(hdr)
L.append("; @launch grid=(512,1,1) block=(256,1,1) lds=73728")
L.append('.amdgcn_target "amdgcn-amd-amdhsa--gfx950"'); L.append(".text")
def start(n):
    L.extend([f".globl {n}",".p2align 8",f".type {n},@function",f"{n}:"])
start(N+"_kernel")
e("s_cmp_ge_u32 s2, 512"); e("s_cbranch_scc0 K1_GO"); e("s_endpgm"); lab("K1_GO"); stamp(0)
load_ptrs(); e("s_memrealtime s[96:97]"); lane_bits()
e("s_cmp_ge_u32 s2, 256"); e("s_cbranch_scc1 K1_GEMM")
k1conv.gen(); k1gemm.gen()
X=os.environ.get("EXP2")
if X:
    a=L.index("K1_CONV:"); b=L.index("K1_GEMM:"); n=0
    for i in range(a,b):
        t=L[i]
        if "buffer_" in t:
            n+=1
            if X=="A" and n>6 and "v255" not in t and " v25," not in t: L[i]="    s_nop 0"
        if X=="B" and ("ds_write_addtid" in t or "ds_read_b128" in t): L[i]="    s_nop 0"
L.append('.section .rodata,"a"')
def desc(n,vg,acc):
    L.extend([".p2align 6",f".amdhsa_kernel {n}",f"  .amdhsa_next_free_vgpr {vg}","  .amdhsa_next_free_sgpr 102",f"  .amdhsa_accum_offset {acc}",
    "  .amdhsa_group_segment_fixed_size 0","  .amdhsa_kernarg_size 160","  .amdhsa_user_sgpr_count 2","  .amdhsa_user_sgpr_kernarg_segment_ptr 1","  .amdhsa_system_sgpr_workgroup_id_x 1",".end_amdhsa_kernel"])
desc(N+"_kernel",256,256)
open(sys.argv[1] if len(sys.argv)>1 else f"cdna_kernels/{N}.s","w").write("\n".join(L)+"\n")
```
